```python
import torch

def _softmax(x, axis=-1):
    return torch.softmax(x, dim=axis)
def _gelu(x):
    return torch.nn.functional.gelu(x, approximate="tanh")
def _silu(x):
    return torch.nn.functional.silu(x)
def _sigmoid(x):
    return torch.sigmoid(x)
def _layernorm(x, axis=-1, eps=1e-5):
    m = x.mean(dim=axis, keepdim=True)
    v = x.var(dim=axis, keepdim=True, unbiased=False)
    return (x - m) / torch.sqrt(v + eps)
def _scatter_add(tgt, idx, src, axis=0):
    return tgt.clone().index_add_(axis, idx, src)
def _segment_sum(src, seg, n):
    out = torch.zeros((n,) + src.shape[1:], dtype=src.dtype)
    return out.index_add_(0, seg, src)
def _pad(x, pw):
    flat = tuple(v for pair in reversed(pw) for v in pair)
    return torch.nn.functional.pad(x, flat)

kernel_name = 'sequential_preLN__spectral_gfnet__dense_activation_mish__prompt'

def setup_inputs():

    _w = (lambda a: (lambda t: t.to(torch.bfloat16) if t.is_floating_point() else t)(torch.as_tensor(a)))
    def _A_setup():
        B, S, D = 1, 2048, 512
        Df = D // 2 + 1
        return {
            "x": _w((lambda *s: torch.randn(*s, dtype=torch.bfloat16) * 0.05)(B, S, D)),
            "w_r": _w((lambda *s: torch.randn(*s, dtype=torch.bfloat16) * 0.4)(S, Df) * 0.02),
            "w_i": _w((lambda *s: torch.randn(*s, dtype=torch.bfloat16) * 0.4)(S, Df) * 0.02),
        }
    _A_in = _A_setup()

    def _B_setup():
        B, S, D, F = 1, 2048, 512, 1792
        return {
            "x": _w((lambda *s: torch.randn(*s, dtype=torch.bfloat16) * 0.05)(B, S, D)),
            "w1": _w((lambda *s: torch.randn(*s, dtype=torch.bfloat16) * 0.8)(D, F) * (D ** -0.5)),
            "b1": _w((lambda *s: torch.randn(*s, dtype=torch.bfloat16) * 0.2)(F)),
            "w2": _w((lambda *s: torch.randn(*s, dtype=torch.bfloat16) * 0.1)(F, D) * (F ** -0.5)),
        }
    _B_in = _B_setup()

    return {
        "A_x": _A_in["x"],
        "A_w_r": _A_in["w_r"],
        "A_w_i": _A_in["w_i"],
        "B_x": _B_in["x"],
        "B_w1": _B_in["w1"],
        "B_b1": _B_in["b1"],
        "B_w2": _B_in["w2"],
    }

def reference(A_x, A_w_r, A_w_i, B_x, B_w1, B_b1, B_w2):
    def _A_ref(x, w_r, w_i):
        B, S, D = x.shape
        X = (lambda x, axes=(-2,-1): torch.fft.rfft2(x.float(), dim=axes))(x, axes=(-2, -1))
        W = w_r + 1j * w_i
        X = X * W
        y = (lambda x, s, axes=(-2,-1): torch.fft.irfft2(x, s=s, dim=axes).to(torch.bfloat16))(X, (S, D), axes=(-2, -1))
        return y

    def _B_ref(x, w1, b1, w2):
        h = torch.einsum("bsd,df->bsf", x, w1) + b1
        sp = torch.log1p(torch.exp(-torch.abs(h))) + torch.where(h > 0, h, torch.zeros_like(h))
        act = h * torch.tanh(sp)
        return torch.einsum("bsf,fd->bsd", act, w2)

    x = A_x
    h = x + _A_ref(_layernorm(x, axis=-1), A_w_r, A_w_i)
    h2 = h + _B_ref(_layernorm(h, axis=-1), B_w1, B_b1, B_w2)
    return h2
```

```python
import re, math

TRANS = ("v_exp_f32", "v_log_f32", "v_rcp_f32", "v_rsq_f32", "v_sqrt_f32", "v_sin_f32", "v_cos_f32", "v_rcp_iflag_f32")
def _regs(tok):
    tok = tok.strip()
    neg = tok.lstrip("-")
    m = re.match(r"^abs\((.*)\)$", neg) or re.match(r"^\|(.*)\|$", neg)
    if m: neg = m.group(1)
    m = re.match(r"^([vas])\[(\d+):(\d+)\]$", neg)
    if m:
        return {f"{m.group(1)}{i}" for i in range(int(m.group(2)), int(m.group(3)) + 1)}
    m = re.match(r"^([vas])(\d+)$", neg)
    if m: return {neg}
    if neg in ("vcc", "vcc_lo", "vcc_hi"): return {"vcc"}
    if neg in ("exec", "exec_lo", "exec_hi"): return {"exec"}
    if neg == "m0": return {"m0"}
    return set()

class Ins:
    def __init__(self, text):
        self.text = text
        t = text.split(";")[0].strip()
        parts = t.split(None, 1)
        self.op = parts[0]
        rest = parts[1] if len(parts) > 1 else ""
        ops, depth, cur = [], 0, ""
        for ch in rest:
            if ch == "[": depth += 1
            if ch == "]": depth -= 1
            if ch == "," and depth == 0:
                ops.append(cur.strip()); cur = ""
            else: cur += ch
        if cur.strip(): ops.append(cur.strip())
        self.mods = ""
        if ops:
            last = ops[-1].split(None, 1)
            if len(last) > 1 and not last[0].endswith(","):
                ops[-1] = last[0]; self.mods = last[1]
        self.ops = ops
        op = self.op
        self.is_mfma = op.startswith("v_mfma")
        self.is_valu = op.startswith("v_") and not self.is_mfma
        self.is_trans = any(op.startswith(x) for x in TRANS)
        self.is_dpp = self.is_valu and any(k in self.mods for k in ("quad_perm", "row_shr", "row_shl", "row_ror", "row_bcast", "row_mirror", "row_half_mirror", "wave_shr", "wave_shl", "row_newbcast"))
        self.is_vmem = op.startswith("buffer_") or op.startswith("global_") or op.startswith("flat_")
        self.is_ds = op.startswith("ds_")
        self.is_salu = op.startswith("s_")
        self.dst, self.src = set(), set()
        R = [_regs(o) for o in ops]
        if self.is_mfma:
            self.dst = R[0]; self.srcA = R[1]; self.srcB = R[2]; self.srcC = R[3]
            self.src = R[1] | R[2] | R[3]
            self.passes = 8 if "32x32x16" in op or "32x32x8" in op else 4
            if "_f32_16x16x4_f32" in op: self.passes = 8
            if "_f32_32x32x2_f32" in op: self.passes = 16
        elif self.is_valu:
            if op.startswith("v_cmp"):
                self.dst = R[0]; self.src = set().union(*R[1:])
            elif op.startswith("v_readlane") or op.startswith("v_readfirstlane"):
                self.dst = R[0]; self.src = set().union(*R[1:])
            elif op.startswith("v_permlane") and "swap" in op:
                self.dst = R[0] | R[1]; self.src = R[0] | R[1]
            elif op in ("v_add_co_u32", "v_sub_co_u32", "v_addc_co_u32", "v_add_co_u32_e32", "v_addc_co_u32_e32"):
                self.dst = R[0] | R[1]; self.src = set().union(*R[2:])
            else:
                self.dst = R[0]; self.src = set().union(*R[1:]) if len(R) > 1 else set()
                if op.startswith("v_fmac") or op.startswith("v_dot2c") or op.startswith("v_pk_fmac") or op.startswith("v_writelane") or self.is_dpp \
                   or op.startswith("v_accvgpr_write") and False:
                    self.src |= R[0]
                if op.startswith("v_cndmask") and len(ops) == 3: self.src.add("vcc")
        elif self.is_vmem:
            lds = " lds" in (" " + self.mods + " ") or " lds " in text or text.rstrip().endswith(" lds")
            self.lds_dma = lds or "_lds_" in op
            if "load" in op and not self.lds_dma:
                self.dst = R[0]; self.src = set().union(*R[1:])
            elif "atomic" in op and "sc0" in self.mods:
                self.dst = R[0]; self.src = set().union(*R)
            else:
                self.src = set().union(*R)
            if self.lds_dma: self.src.add("m0")
            self.wide_store = ("store" in op and ("x3" in op or "x4" in op))
            self.store_data = R[0] if op.startswith("buffer_store") else (R[1] if op.startswith("global_store") else set())
        elif self.is_ds:
            if op.startswith("ds_read") or op.startswith("ds_bpermute") or op.startswith("ds_swizzle") or op.startswith("ds_permute"):
                self.dst = R[0]; self.src = set().union(*R[1:])
            else:
                self.src = set().union(*R)
        elif self.is_salu:
            if op.startswith("s_cmp") or op.startswith("s_cbranch") or op in ("s_waitcnt", "s_nop", "s_barrier", "s_endpgm", "s_branch", "s_sleep", "s_setprio"):
                self.src = set().union(*R) if R else set()
            else:
                self.dst = R[0] if R else set(); self.src = set().union(*R[1:]) if len(R) > 1 else set()
                if "saveexec" in op: self.dst = self.dst | {"exec"}
    def states(self):
        if self.op == "s_nop": return int(self.ops[0], 0) + 1
        return 1

def needed(prod, cons):
    n = 0
    vd = {r for r in prod.dst if r[0] in "va" and r not in ("vcc",)}
    sd = {r for r in prod.dst if r[0] == "s" or r == "vcc"}
    if prod.is_valu:
        if cons.is_mfma and vd & cons.src: n = max(n, 2)
        if cons.is_valu:
            if cons.is_dpp and vd & cons.src: n = max(n, 2)
            if (cons.op.startswith("v_readlane") or cons.op.startswith("v_readfirstlane")) and vd & cons.src: n = max(n, 1)
            if cons.op.startswith("v_permlane") and vd & cons.src: n = max(n, 2)
            if prod.is_trans and not cons.is_trans and vd & cons.src: n = max(n, 1)
            if prod.is_trans and cons.is_trans and vd & cons.src: n = max(n, 1)
            if sd & cons.src:
                n = max(n, 4 if (cons.op.startswith("v_readlane") or cons.op.startswith("v_writelane")) else 2)
            if "exec" in prod.dst: n = max(n, 5)
            if ("op_sel" in prod.mods or "dst_sel" in prod.mods) and vd & (cons.src | cons.dst): n = max(n, 1)
        if cons.is_vmem and sd & cons.src: n = max(n, 5)
        if cons.is_salu and sd & cons.src: n = max(n, 1)
        if prod.is_trans and (cons.is_vmem or cons.is_ds) and vd & cons.src: n = max(n, 1)
    if prod.is_mfma:
        p = prod.passes
        d = prod.dst
        if cons.is_mfma:
            if d & (cons.srcA | cons.srcB): n = max(n, p + 4)
            if d & cons.srcC:
                if not (cons.srcC == d and cons.op == prod.op): n = max(n, p + 2)
            elif d & cons.dst:
                n = max(n, p + 2)
        elif cons.is_valu or cons.is_vmem or cons.is_ds:
            if d & (cons.src | cons.dst): n = max(n, p + 4)
        if cons.is_valu and (prod.srcC & cons.dst): n = max(n, p - 1)
    if prod.is_salu and "m0" in prod.dst and cons.is_vmem and getattr(cons, "lds_dma", False): n = max(n, 1)
    if prod.is_salu and "exec" in prod.dst and (cons.is_dpp or cons.is_mfma): n = max(n, 4)
    if prod.is_vmem and getattr(prod, "wide_store", False):
        if cons.is_valu and prod.store_data & cons.dst: n = max(n, 2)
        elif (cons.is_vmem or cons.is_ds) and prod.store_data & cons.dst: n = max(n, 1)
    return n

class Asm:
    def __init__(self):
        self.items = []
        self.lbl = 0
    def raw(self, s):
        for l in s.split("\n"): self.items.append(l)
    def __call__(self, s=""):
        for l in s.split("\n"):
            t = l.strip()
            if not t: continue
            if t.endswith(":") or t.startswith(".") or t.startswith(";"):
                self.items.append(t)
            else:
                self.items.append(Ins(t))
    def label(self, base="L"):
        self.lbl += 1
        return f"{base}_{self.lbl}"
    def text(self, fix=True):
        out = []; hist = []
        nn = 0
        for it in self.items:
            if isinstance(it, str):
                out.append(it)
                if it.endswith(":") and not it.startswith(";"):
                    pass
                continue
            if fix:
                need = 0; dist = 0
                for prev in reversed(hist):
                    if dist >= 20: break
                    n = needed(prev, it) - dist
                    need = max(need, n)
                    dist += prev.states()
                while need > 0:
                    k = min(need, 16)
                    nop = Ins(f"s_nop {k-1}")
                    out.append("    " + nop.text); hist.append(nop); need -= k; nn += 1
            out.append("    " + it.text); hist.append(it)
            if len(hist) > 64: hist = hist[-40:]
        self.nops_inserted = nn
        return "\n".join(out) + "\n"

def kernel_desc(name, vgpr, sgpr=102, accum=None, extra=""):
    if accum is None:
        accum = min(256, (vgpr + 3) // 4 * 4)
    return f""".section .rodata,"a"
.p2align 6
.amdhsa_kernel {name}
  .amdhsa_next_free_vgpr {vgpr}
  .amdhsa_next_free_sgpr {sgpr}
  .amdhsa_accum_offset {accum}
  .amdhsa_group_segment_fixed_size 0
  .amdhsa_kernarg_size 80
  .amdhsa_user_sgpr_count 2
  .amdhsa_user_sgpr_kernarg_segment_ptr 1
  .amdhsa_system_sgpr_workgroup_id_x 1
  .amdhsa_float_denorm_mode_32 3
  .amdhsa_float_denorm_mode_16_64 3
{extra}.end_amdhsa_kernel
.text
"""

def kernel_head(name):
    return f""".text
.globl {name}
.p2align 8
.type {name},@function
{name}:
"""

def fhex(x):
    import struct
    return "0x%08x" % struct.unpack("<I", struct.pack("<f", x))[0]

class Regs:
    def __init__(self, start=1, limit=256, prefix="v"):
        self.n = start; self.limit = limit; self.prefix = prefix; self.hi = start
    def alloc(self, cnt=1, align=1):
        self.n = (self.n + align - 1) // align * align
        b = self.n; self.n += cnt
        assert self.n <= self.limit, f"out of registers: {self.n}"
        self.hi = max(self.hi, self.n)
        return b
    def mark(self): return self.n
    def release(self, m): self.n = m
def vr(b, n=1):
    return f"v{b}" if n == 1 else f"v[{b}:{b+n-1}]"
def ar(b, n=1):
    return f"a{b}" if n == 1 else f"a[{b}:{b+n-1}]"
def sr(b, n=1):
    return f"s{b}" if n == 1 else f"s[{b}:{b+n-1}]"
```

```python
import numpy as np
S, D, F = 2048, 512, 1792
CS = 8192 + 128
OFF_X1 = 0
OFF_WT = 256 * CS
OFF_Y  = 2 * 256 * CS
OFF_XN = 3 * 256 * CS
OFF_H  = OFF_XN + S * D * 2
OFF_ACT = OFF_H + S * D * 2
WS_USED = OFF_ACT + S * F * 2

def bf2f(a): return (a.astype(np.uint32) << 16).view(np.float32)
def f2bf(x):
    u = np.ascontiguousarray(x, dtype=np.float32).view(np.uint32)
    return ((u + 0x7FFF + ((u >> 16) & 1)) >> 16).astype(np.uint16)
def rb(x): return bf2f(f2bf(x))

def ref_stage1(x):
    x = x.astype(np.float64)
    m = x.mean(1, keepdims=True); v = x.var(1, keepdims=True)
    xn = (x - m) / np.sqrt(v + 1e-5)
    X = np.fft.rfft(xn, axis=1)
    out = np.empty((S, 256), np.complex128)
    out[:, 1:] = X[:, 1:256] * 2.0 ** -19
    out[:, 0] = X[:, 256].real * 2.0 ** -20
    return out
def x1_layout(Xc):
    c = np.arange(256)[:, None, None]; gr = np.arange(512)[None, :, None]; j = np.arange(4)[None, None, :]
    a = gr & 31; bq = gr >> 5
    s = a + 32 * (4 * bq + j)
    v = Xc[s, c]
    return np.stack([v.real, v.imag], -1)
def wt_layout(wr, wi):
    c = np.arange(256); col = np.where(c == 0, 256, c)
    w = np.arange(4)[:, None, None, None]; mt = np.arange(2)[None, :, None, None]
    l = np.arange(64)[None, None, :, None]; r = np.arange(4)[None, None, None, :]
    ks = 16 * w + (l & 15) + 64 * (16 * mt + 4 * (l >> 4) + r)
    out = np.empty((256, 4, 2, 64, 4, 2), wr.dtype)
    for ci in range(256):
        out[ci, ..., 0] = wr[ks, col[ci]]; out[ci, ..., 1] = wi[ks, col[ci]]
    return out
def ref_stage2(Xc, wr, wi):
    c = np.arange(256); col = np.where(c == 0, 256, c)
    W = wr[:, col].astype(np.float64) + 1j * wi[:, col].astype(np.float64)
    Z = np.fft.fft(Xc, axis=0) * W
    return np.fft.ifft(Z, axis=0) * S
def ref_stage3(Yc, x):
    full = np.zeros((S, 257), np.complex128)
    full[:, 1:256] = Yc[:, 1:] / 2.0
    full[:, 256] = Yc[:, 0].real
    y = np.fft.irfft(full, n=D, axis=1) * D
    h = x.astype(np.float64) + y
    m = h.mean(1, keepdims=True); v = h.var(1, keepdims=True)
    xn = (h - m) / np.sqrt(v + 1e-5)
    return h, xn
def xn_layout(xn):
    st = np.arange(64)[:, None, None, None]; u = np.arange(32)[None, :, None, None]
    l = np.arange(64)[None, None, :, None]; e = np.arange(8)[None, None, None, :]
    row = 32 * st + (l & 31); g4 = 2 * (u & 1) + (l >> 5)
    d = 32 * (u >> 1) + 4 * g4 + (e & 3) + 16 * (e >> 2)
    return xn[row, d]
def mish(h):
    sp = np.log1p(np.exp(-np.abs(h))) + np.maximum(h, 0)
    return h * np.tanh(sp)
def act_layout(act):
    st = np.arange(64)[:, None, None, None]; v = np.arange(112)[None, :, None, None]
    l = np.arange(64)[None, None, :, None]; e = np.arange(8)[None, None, None, :]
    row = 32 * st + (l & 31); g = l >> 5
    f = 16 * v + 4 * g + (e & 3) + 8 * (e >> 2)
    return act[row, f]
def full_model(inp):
    x = inp["A_x"][0]; wr = inp["A_w_r"]; wi = inp["A_w_i"]
    Xc = ref_stage1(x)
    Yc = ref_stage2(Xc, wr, wi)
    h, xn = ref_stage3(Yc, x)
    pre = xn @ inp["B_w1"].astype(np.float64) + inp["B_b1"].astype(np.float64)
    act = mish(pre)
    out = h + act @ inp["B_w2"].astype(np.float64)
    return dict(Xc=Xc, Yc=Yc, h=h, xn=xn, act=act, out=out)
```

```python
import sys, math
from asmlib import *
import model as M
CS = M.CS
KARG = dict(x=0, wr=8, wi=16, bx=24, w1=32, b1=40, w2=48, out=56, dbg=64, ws=72)
S_, D_, F_ = 2048, 512, 1792

def srd(a, s, ptr, size, add=0):
    if add:
        a(f"s_add_u32 s{s}, s{ptr}, {add}")
        a(f"s_addc_u32 s{s+1}, s{ptr+1}, 0")
    else:
        a(f"s_mov_b32 s{s}, s{ptr}")
        a(f"s_mov_b32 s{s+1}, s{ptr+1}")
    a(f"s_mov_b32 s{s+2}, {size}")
    a(f"s_mov_b32 s{s+3}, 0x00020000")

def cossin(a, dc, ds, vrev):
    if dc is not None: a(f"v_cos_f32 v{dc}, v{vrev}")
    if ds is not None: a(f"v_sin_f32 v{ds}, v{vrev}")

def wave_reduce_add(a, regs):
    for mod in ("row_shr:1 row_mask:0xf bank_mask:0xf", "row_shr:2 row_mask:0xf bank_mask:0xf",
                "row_shr:4 row_mask:0xf bank_mask:0xf", "row_shr:8 row_mask:0xf bank_mask:0xf",
                "row_bcast:15 row_mask:0xa bank_mask:0xf", "row_bcast:31 row_mask:0xc bank_mask:0xf"):
        for r in regs:
            a(f"v_add_f32 v{r}, v{r}, v{r} {mod}" + (" bound_ctrl:0" if "shr" in mod else ""))

def k1(a, name):
    a.raw(kernel_head(name))
    R = Regs(1, 256)
    a("s_cmp_ge_u32 s2, 256")
    a(f"s_cbranch_scc1 L_{name}_end")
    a("s_load_dwordx4 s[4:7], s[0:1], 0")
    a("s_load_dwordx2 s[8:9], s[0:1], 16")
    a("s_load_dwordx2 s[10:11], s[0:1], 32")
    a("s_load_dwordx2 s[12:13], s[0:1], 48")
    a("s_load_dwordx2 s[14:15], s[0:1], 72")
    lane = R.alloc(); n15 = R.alloc(); g = R.alloc(); t0 = R.alloc(); t1 = R.alloc(); t2 = R.alloc()
    a(f"v_and_b32 v{lane}, 63, v0")
    a(f"v_lshrrev_b32 v{t0}, 6, v0")
    a(f"v_and_b32 v{n15}, 15, v0")
    a(f"v_readfirstlane_b32 s16, v{t0}")
    a(f"v_bfe_u32 v{g}, v0, 4, 2")
    a("s_lshr_b32 s17, s2, 5\ns_lshl_b32 s17, s17, 3\ns_and_b32 s18, s2, 7\ns_add_u32 s17, s17, s18")
    a("s_lshr_b32 s19, s17, 2")
    a("s_and_b32 s17, s17, 3\ns_lshl_b32 s17, s17, 2\ns_lshr_b32 s18, s2, 3\ns_and_b32 s18, s18, 3\ns_add_u32 s17, s17, s18")
    a("s_and_b32 s20, s16, 1\ns_lshr_b32 s21, s16, 1")
    a("s_lshl_b32 s17, s17, 1\ns_add_u32 s17, s17, s20")
    a("s_lshl_b32 s22, s19, 7\ns_add_u32 s22, s22, s17")
    a("s_lshl_b32 s22, s22, 10")
    a("s_lshl_b32 s23, s19, 5\ns_add_u32 s23, s23, s17\ns_lshl_b32 s23, s23, 4")
    a("s_lshl_b32 s24, s16, 12")
    voff16 = R.alloc()
    a(f"v_lshlrev_b32 v{voff16}, 4, v{lane}")
    a("s_waitcnt lgkmcnt(0)")
    srd(a, 28, 4, S_ * D_ * 2)
    for j in range(4):
        a(f"s_add_u32 m0, s24, {j*1024}")
        a(f"s_add_u32 s25, s22, {j*32*1024}")
        a(f"buffer_load_dwordx4 v{voff16}, s[28:31], s25 offen lds")
    srd(a, 32, 6, S_ * 257 * 2)
    srd(a, 36, 8, S_ * 257 * 2)
    srd(a, 40, 14, M.WS_USED)
    srd(a, 44, 10, D_ * F_ * 2)
    srd(a, 48, 12, D_ * F_ * 2)
    wv = [R.alloc() for _ in range(16)]
    wo0 = R.alloc(); wo1 = R.alloc(); wdst = R.alloc()
    a("s_lshr_b32 s52, s2, 3\ns_and_b32 s52, s52, 3")
    a("s_and_b32 s53, s2, 7")
    a("s_lshr_b32 s54, s2, 5")
    a(f"v_and_b32 v{t0}, 31, v0")
    a(f"v_lshrrev_b32 v{t1}, 5, v0")
    a("s_lshl_b32 s55, s54, 5")
    a(f"v_add_u32 v{t0}, s55, v{t0}")
    a(f"v_cmp_eq_u32 vcc, 0, v{t0}")
    a(f"v_mov_b32 v{t2}, 256")
    a(f"v_cndmask_b32 v{t2}, v{t0}, v{t2}, vcc")
    a("s_lshl_b32 s56, s52, 4\ns_lshl_b32 s57, s53, 8\ns_add_u32 s56, s56, s57")
    a(f"v_add_u32 v{wo0}, s56, v{t1}")
    a(f"s_movk_i32 s58, 514")
    a(f"v_mul_lo_u32 v{wo0}, v{wo0}, s58")
    a(f"v_lshl_add_u32 v{wo0}, v{t2}, 1, v{wo0}")
    a(f"v_add_u32 v{wo1}, {8*514}, v{wo0}")
    a(f"s_mov_b32 s58, {CS}")
    a(f"v_mul_lo_u32 v{wdst}, v{t0}, s58")
    a(f"v_lshl_add_u32 v{wdst}, v{t1}, 4, v{wdst}")
    a("s_lshl_b32 s59, s52, 1\ns_lshr_b32 s60, s53, 2\ns_add_u32 s59, s59, s60\ns_lshl_b32 s59, s59, 6")
    a("s_and_b32 s60, s53, 3\ns_lshl_b32 s60, s60, 4\ns_add_u32 s59, s59, s60\ns_lshl_b32 s59, s59, 4")
    a(f"s_add_u32 s59, s59, {M.OFF_WT}")
    for r in range(4):
        a(f"s_mov_b32 s{60+r}, {r*64*514}")
    for it in range(2):
        for r in range(4):
            o = wo0 if it == 0 else wo1
            a(f"buffer_load_ushort v{wv[it*8+r*2]}, v{o}, s[32:35], s{60+r} offen")
            a(f"buffer_load_ushort v{wv[it*8+r*2+1]}, v{o}, s[36:39], s{60+r} offen")
    pf = R.alloc(16, 4)
    a("s_mul_i32 s64, s2, 7168\ns_lshl_b32 s65, s16, 11\ns_add_u32 s64, s64, s65")
    a(f"buffer_load_dwordx4 {vr(pf,4)}, v{voff16}, s[44:47], s64 offen")
    a(f"buffer_load_dwordx4 {vr(pf+4,4)}, v{voff16}, s[44:47], s64 offen offset:1024")
    a(f"buffer_load_dwordx4 {vr(pf+8,4)}, v{voff16}, s[48:51], s64 offen")
    a(f"buffer_load_dwordx4 {vr(pf+12,4)}, v{voff16}, s[48:51], s64 offen offset:1024")
    NV_AFTER_X = 16 + 4
    c1f = R.alloc(); gf4 = R.alloc()
    a(f"s_lshl_b32 s25, s21, 4")
    a(f"v_add_u32 v{t0}, s25, v{n15}")
    a(f"v_cvt_f32_u32 v{c1f}, v{t0}")
    a(f"v_lshlrev_b32 v{t1}, 2, v{g}")
    a(f"v_cvt_f32_u32 v{gf4}, v{t1}")
    sgn = R.alloc()
    a(f"v_and_b32 v{t1}, 1, v{t0}")
    a(f"v_mov_b32 v{sgn}, 0x80008000")
    a(f"v_mul_lo_u32 v{sgn}, v{sgn}, v{t1}")
    BAr = R.alloc(4, 4); BAi = R.alloc(4, 4); BB = R.alloc(4, 4)
    tc = [R.alloc() for _ in range(4)]; ts = [R.alloc() for _ in range(4)]
    m0_ = R.mark()
    cc = [R.alloc() for _ in range(4)]; ss = [R.alloc() for _ in range(4)]; tm = [R.alloc() for _ in range(4)]
    for e in range(4):
        a(f"v_add_f32 v{tm[e]}, {float(e)}, v{gf4}") if e else a(f"v_mov_b32 v{tm[e]}, v{gf4}")
    dd = tm
    rv = [R.alloc() for _ in range(4)]
    for e in range(4):
        a(f"v_mul_f32 v{rv[e]}, v{c1f}, v{dd[e]}")
    for e in range(4):
        a(f"v_mul_f32 v{cc[e]}, {fhex(1/512)}, v{rv[e]}")
    for e in range(4):
        a(f"v_cos_f32 v{tc[e]}, v{cc[e]}")
        a(f"v_sin_f32 v{ts[e]}, v{cc[e]}")
    for e in range(4):
        a(f"v_mul_f32 v{rv[e]}, {fhex(1/32)}, v{rv[e]}")
    for e in range(4):
        a(f"v_cos_f32 v{cc[e]}, v{rv[e]}")
        a(f"v_sin_f32 v{ss[e]}, v{rv[e]}")
    a(f"v_cvt_pk_bf16_f32 v{BAr}, v{cc[0]}, v{cc[1]}")
    a(f"v_cvt_pk_bf16_f32 v{BAr+1}, v{cc[2]}, v{cc[3]}")
    a(f"v_cvt_pk_bf16_f32 v{BAi}, -v{ss[0]}, -v{ss[1]}")
    a(f"v_cvt_pk_bf16_f32 v{BAi+1}, -v{ss[2]}, -v{ss[3]}")
    a(f"v_xor_b32 v{BAr+2}, v{sgn}, v{BAr}")
    a(f"v_xor_b32 v{BAr+3}, v{sgn}, v{BAr+1}")
    a(f"v_xor_b32 v{BAi+2}, v{sgn}, v{BAi}")
    a(f"v_xor_b32 v{BAi+3}, v{sgn}, v{BAi+1}")
    a(f"v_lshrrev_b32 v{t0}, 1, v{n15}")
    a(f"v_cvt_f32_u32 v{t0}, v{t0}")
    a(f"v_and_b32 v{t1}, 1, v{n15}")
    a(f"v_cvt_f32_u32 v{t1}, v{t1}")
    a(f"v_mul_f32 v{t0}, {fhex(1/16)}, v{t0}")
    a(f"v_mul_f32 v{t1}, 0.25, v{t1}") if False else a(f"v_mul_f32 v{t1}, {fhex(0.25)}, v{t1}")
    for e in range(4):
        a(f"v_fma_f32 v{rv[e]}, v{t0}, v{dd[e]}, v{t1}")
    for e in range(4):
        a(f"v_cos_f32 v{cc[e]}, v{rv[e]}")
        a(f"v_sin_f32 v{ss[e]}, v{rv[e]}")
    a(f"v_cvt_pk_bf16_f32 v{BB}, v{cc[0]}, v{cc[1]}")
    a(f"v_cvt_pk_bf16_f32 v{BB+1}, v{cc[2]}, v{cc[3]}")
    a(f"v_cvt_pk_bf16_f32 v{BB+2}, v{ss[0]}, v{ss[1]}")
    a(f"v_cvt_pk_bf16_f32 v{BB+3}, v{ss[2]}, v{ss[3]}")
    R.release(m0_)
    sto = R.alloc()
    a(f"s_lshl_b32 s25, s21, 4")
    a(f"v_lshl_add_u32 v{t0}, v{g}, 6, v{n15}")
    a(f"v_add_u32 v{t0}, s25, v{t0}")
    a(f"s_mov_b32 s58, {CS}")
    a(f"v_mul_lo_u32 v{sto}, v{t0}, s58")
    lds8 = R.alloc()
    a(f"v_lshlrev_b32 v{lds8}, 3, v{lane}")
    a(f"v_add_u32 v{lds8}, s24, v{lds8}")
    ones = R.alloc(); sg1 = R.alloc()
    a(f"v_mov_b32 v{ones}, 0x3f803f80")
    a(f"v_and_b32 v{t0}, 1, v{lane}")
    a(f"v_cvt_f32_u32 v{t0}, v{t0}")
    a(f"v_fma_f32 v{sg1}, v{t0}, -2.0, 1.0")
    A = [R.alloc(4, 4) for _ in range(4)]
    a(f"s_waitcnt vmcnt({NV_AFTER_X})")
    for j in range(4):
        a(f"ds_read_b64_tr_b16 {vr(A[j],2)}, v{lds8} offset:{j*1024}")
        a(f"ds_read_b64_tr_b16 {vr(A[j]+2,2)}, v{lds8} offset:{j*1024+512}")
    U = [R.alloc(8, 4) for _ in range(4)]
    sq = [R.alloc() for _ in range(4)]; sm = [R.alloc() for _ in range(4)]; ny = [R.alloc() for _ in range(4)]
    for j in range(4):
        a(f"s_waitcnt lgkmcnt({2*(3-j)})")
        a(f"v_mfma_f32_16x16x32_bf16 {vr(U[j],4)}, {vr(A[j],4)}, {vr(BAr,4)}, 0")
        a(f"v_mfma_f32_16x16x32_bf16 {vr(U[j]+4,4)}, {vr(A[j],4)}, {vr(BAi,4)}, 0")
    for j in range(4):
        a(f"v_dot2_f32_bf16 v{sq[j]}, v{A[j]}, v{A[j]}, 0")
        a(f"v_dot2_f32_bf16 v{sm[j]}, v{A[j]}, v{ones}, 0")
    for k in range(1, 4):
        for j in range(4):
            a(f"v_dot2_f32_bf16 v{sq[j]}, v{A[j]+k}, v{A[j]+k}, v{sq[j]}")
            a(f"v_dot2_f32_bf16 v{sm[j]}, v{A[j]+k}, v{ones}, v{sm[j]}")
    for j in range(4):
        a(f"v_mul_f32 v{ny[j]}, v{sg1}, v{sm[j]}")
    wave_reduce_add(a, sq + sm + ny)
    P = [R.alloc(4, 4) for _ in range(4)]
    tw = [R.alloc() for _ in range(8)]
    for j in range(4):
        for r in range(4):
            a(f"v_mul_f32 v{tw[r]}, v{U[j]+r}, v{tc[r]}")
            a(f"v_mul_f32 v{tw[4+r]}, v{U[j]+4+r}, v{tc[r]}")
        for r in range(4):
            a(f"v_fma_f32 v{tw[r]}, v{U[j]+4+r}, v{ts[r]}, v{tw[r]}")
            a(f"v_fma_f32 v{tw[4+r]}, -v{U[j]+r}, v{ts[r]}, v{tw[4+r]}")
        a(f"v_cvt_pk_bf16_f32 v{P[j]}, v{tw[0]}, v{tw[1]}")
        a(f"v_cvt_pk_bf16_f32 v{P[j]+1}, v{tw[2]}, v{tw[3]}")
        a(f"v_cvt_pk_bf16_f32 v{P[j]+2}, v{tw[4]}, v{tw[5]}")
        a(f"v_cvt_pk_bf16_f32 v{P[j]+3}, v{tw[6]}, v{tw[7]}")
        a(f"v_mfma_f32_16x16x32_bf16 {vr(U[j],4)}, {vr(BB,4)}, {vr(P[j],4)}, 0")
    for j in range(4):
        a(f"v_mul_f32 v{sm[j]}, {fhex(1/512)}, v{sm[j]}")
    for j in range(4):
        a(f"v_mul_f32 v{sm[j]}, v{sm[j]}, v{sm[j]}")
    a(f"s_mov_b32 s26, {fhex(1/512)}")
    for j in range(4):
        a(f"v_fma_f32 v{sq[j]}, v{sq[j]}, s26, -v{sm[j]}")
    for j in range(4):
        a(f"v_max_f32 v{sq[j]}, 0, v{sq[j]}")
    for j in range(4):
        a(f"v_add_f32 v{sq[j]}, {fhex(1e-5)}, v{sq[j]}")
    for j in range(4):
        a(f"v_rsq_f32 v{sq[j]}, v{sq[j]}")
    for j in range(4):
        a(f"v_mul_f32 v{sq[j]}, {fhex(2.0**-19)}, v{sq[j]}")
    for j in range(4):
        a(f"v_mul_f32 v{ny[j]}, v{sq[j]}, v{ny[j]}")
    for j in range(4):
        a(f"v_mul_f32 v{ny[j]}, 0.5, v{ny[j]}")
    for j in range(4):
        a(f"v_readlane_b32 s{66+j}, v{sq[j]}, 63")
        a(f"v_readlane_b32 s{70+j}, v{ny[j]}, 63")
    Q0 = R.alloc(4, 4); Q1 = R.alloc(4, 4)
    for j in range(4):
        for r in range(4):
            a(f"v_mul_f32 v{U[j]+r}, s{66+j}, v{U[j]+r}")
    for j in range(4):
        a(f"v_cvt_pk_bf16_f32 v{Q0+j}, v{U[j]}, v{U[j]+1}")
        a(f"v_cvt_pk_bf16_f32 v{Q1+j}, v{U[j]+2}, v{U[j]+3}")
    a("s_cmp_eq_u32 s21, 0")
    a(f"s_cbranch_scc0 L_{name}_nonyq")
    for j in range(4):
        a(f"v_mov_b32 v{t0}, s{70+j}")
        a(f"v_cvt_pk_bf16_f32 v{t0}, v{t0}, 0")
        a(f"v_readfirstlane_b32 s{74+j}, v{t0}")
        a(f"v_writelane_b32 v{Q0+j}, s{74+j}, 0")
    a(f"L_{name}_nonyq:")
    a("s_nop 4")
    a(f"s_add_u32 s27, s23, {M.OFF_X1}")
    a(f"s_add_u32 s25, s27, {32*CS}")
    a(f"buffer_store_dwordx4 {vr(Q0,4)}, v{sto}, s[40:43], s27 offen")
    a(f"buffer_store_dwordx4 {vr(Q1,4)}, v{sto}, s[40:43], s25 offen")
    a("s_waitcnt vmcnt(6)")
    WQ = [R.alloc(4, 4) for _ in range(2)]
    for it in range(2):
        for r in range(4):
            a(f"v_lshl_or_b32 v{WQ[it]+r}, v{wv[it*8+r*2+1]}, 16, v{wv[it*8+r*2]}")
    a(f"buffer_store_dwordx4 {vr(WQ[0],4)}, v{wdst}, s[40:43], s59 offen")
    a(f"buffer_store_dwordx4 {vr(WQ[1],4)}, v{wdst}, s[40:43], s59 offen offset:128")
    a(f"L_{name}_end:")
    a("s_endpgm")
    a.raw(kernel_desc(name, R.hi, 96))
    return R.hi


def cmul_tw(a, dre, dim_, sre, sim, tc, ts):
    n = len(dre)
    for r in range(n):
        a(f"v_mul_f32 v{dre[r]}, v{sre[r]}, v{tc[r]}")
        a(f"v_mul_f32 v{dim_[r]}, v{sim[r]}, v{tc[r]}")
    for r in range(n):
        a(f"v_fma_f32 v{dre[r]}, v{sim[r]}, v{ts[r]}, v{dre[r]}")
        a(f"v_fma_f32 v{dim_[r]}, -v{sre[r]}, v{ts[r]}, v{dim_[r]}")

def k2(a, name):
    a.raw(kernel_head(name))
    R = Regs(1, 256)
    a("s_cmp_ge_u32 s2, 256")
    a(f"s_cbranch_scc1 L_{name}_end")
    a("s_load_dwordx2 s[14:15], s[0:1], 72")
    lane = R.alloc(); n15 = R.alloc(); g = R.alloc(); t0 = R.alloc(); t1 = R.alloc(); t2 = R.alloc()
    voff16 = R.alloc()
    a(f"v_and_b32 v{lane}, 63, v0")
    a(f"v_lshrrev_b32 v{t0}, 6, v0")
    a(f"v_and_b32 v{n15}, 15, v0")
    a(f"v_readfirstlane_b32 s16, v{t0}")
    a(f"v_bfe_u32 v{g}, v0, 4, 2")
    a(f"v_lshlrev_b32 v{voff16}, 4, v{lane}")
    a(f"s_mul_i32 s17, s2, {CS}")
    a("s_lshl_b32 s18, s16, 11")
    a("s_add_u32 s19, s17, s18")
    a("s_waitcnt lgkmcnt(0)")
    srd(a, 40, 14, M.WS_USED)
    a(f"s_add_u32 s20, s19, {M.OFF_X1}")
    a("s_mov_b32 m0, s18")
    a(f"buffer_load_dwordx4 v{voff16}, s[40:43], s20 offen lds")
    a(f"buffer_load_dwordx4 v{voff16}, s[40:43], s20 offen offset:1024 lds")
    Wv = [R.alloc(4, 4) for _ in range(2)]
    a(f"s_add_u32 s21, s19, {M.OFF_WT}")
    a(f"buffer_load_dwordx4 {vr(Wv[0],4)}, v{voff16}, s[40:43], s21 offen")
    a(f"buffer_load_dwordx4 {vr(Wv[1],4)}, v{voff16}, s[40:43], s21 offen offset:1024")
    kbf = R.alloc(); gf4 = R.alloc(); nf = R.alloc(); spar = R.alloc()
    a("s_lshl_b32 s22, s16, 4")
    a(f"v_add_u32 v{t0}, s22, v{n15}")
    a(f"v_cvt_f32_u32 v{kbf}, v{t0}")
    a(f"v_cvt_f32_u32 v{nf}, v{n15}")
    a(f"v_lshlrev_b32 v{t1}, 2, v{g}")
    a(f"v_cvt_f32_u32 v{gf4}, v{t1}")
    a(f"v_and_b32 v{t1}, 1, v{n15}")
    a(f"v_mov_b32 v{spar}, 0x80008000")
    a(f"v_mul_lo_u32 v{spar}, v{spar}, v{t1}")
    F64r = [R.alloc(4, 4) for _ in range(4)]; F64i = [R.alloc(4, 4) for _ in range(4)]
    Co = [R.alloc(4, 4) for _ in range(2)]; Si = [R.alloc(4, 4) for _ in range(2)]; Ns = [R.alloc(4, 4) for _ in range(2)]
    t1c = [R.alloc() for _ in range(8)]; t1s = [R.alloc() for _ in range(8)]
    t2c = [R.alloc() for _ in range(8)]; t2s = [R.alloc() for _ in range(8)]
    mk = R.mark()
    dd = [R.alloc() for _ in range(4)]; rv = [R.alloc() for _ in range(8)]
    cc = [R.alloc() for _ in range(8)]; ss = [R.alloc() for _ in range(8)]
    for e in range(4):
        a(f"v_add_f32 v{dd[e]}, {float(e)}, v{gf4}") if e else a(f"v_mov_b32 v{dd[e]}, v{gf4}")
    k64 = t0; k64b = t1
    a(f"v_mul_f32 v{k64}, {fhex(1/64)}, v{kbf}")
    a(f"v_mul_f32 v{k64b}, {fhex(16/64)}, v{kbf}")
    for i in range(4):
        a(f"v_mul_f32 v{rv[i]}, v{k64}, v{dd[i]}")
        a(f"v_fma_f32 v{rv[4+i]}, v{k64}, v{dd[i]}, v{k64b}")
    for i in range(8):
        a(f"v_cos_f32 v{cc[i]}, v{rv[i]}")
        a(f"v_sin_f32 v{ss[i]}, v{rv[i]}")
    for t in range(2):
        for i in range(4):
            a(f"v_cvt_pk_bf16_f32 v{F64r[t]+i}, v{cc[4*t+i]}, v{ss[4*t+i]}")
            a(f"v_cvt_pk_bf16_f32 v{F64i[t]+i}, -v{ss[4*t+i]}, v{cc[4*t+i]}")
    for t in range(2):
        for i in range(4):
            a(f"v_xor_b32 v{F64r[t+2]+i}, v{spar}, v{F64r[t]+i}")
            a(f"v_xor_b32 v{F64i[t+2]+i}, v{spar}, v{F64i[t]+i}")
    a(f"v_mul_f32 v{t0}, {fhex(1/32)}, v{nf}")
    for e in range(4):
        a(f"v_mul_f32 v{rv[e]}, v{t0}, v{dd[e]}")
    for e in range(4):
        a(f"v_cos_f32 v{cc[e]}, v{rv[e]}")
        a(f"v_sin_f32 v{ss[e]}, v{rv[e]}")
    a(f"v_cvt_pk_bf16_f32 v{Co[0]}, v{cc[0]}, v{cc[1]}")
    a(f"v_cvt_pk_bf16_f32 v{Co[0]+1}, v{cc[2]}, v{cc[3]}")
    a(f"v_cvt_pk_bf16_f32 v{Si[0]}, v{ss[0]}, v{ss[1]}")
    a(f"v_cvt_pk_bf16_f32 v{Si[0]+1}, v{ss[2]}, v{ss[3]}")
    for k in range(2):
        a(f"v_xor_b32 v{Co[0]+2+k}, v{spar}, v{Co[0]+k}")
        a(f"v_xor_b32 v{Si[0]+2+k}, v{spar}, v{Si[0]+k}")
    for k in range(4):
        a(f"v_xor_b32 v{Co[1]+k}, 0x80000000, v{Co[0]+k}")
        a(f"v_xor_b32 v{Si[1]+k}, 0x80000000, v{Si[0]+k}")
    for m in range(2):
        for k in range(4):
            a(f"v_xor_b32 v{Ns[m]+k}, 0x80008000, v{Si[m]+k}")
    a(f"v_mul_f32 v{t0}, {fhex(1/2048)}, v{kbf}")
    a(f"v_mul_f32 v{t1}, {fhex(16/2048)}, v{kbf}")
    for r in range(4):
        a(f"v_mul_f32 v{rv[r]}, v{t0}, v{dd[r]}")
        a(f"v_fma_f32 v{rv[4+r]}, v{t0}, v{dd[r]}, v{t1}")
    for i in range(8):
        a(f"v_cos_f32 v{t1c[i]}, v{rv[i]}")
        a(f"v_sin_f32 v{t1s[i]}, v{rv[i]}")
    a(f"v_cvt_f32_u32 v{t2}, s22")
    for r in range(4):
        a(f"v_add_f32 v{cc[r]}, v{t2}, v{dd[r]}")
    a(f"v_mul_f32 v{t0}, {fhex(1/2048)}, v{nf}")
    a(f"v_add_f32 v{t1}, {fhex(16/2048)}, v{t0}")
    for r in range(4):
        a(f"v_mul_f32 v{rv[r]}, v{t0}, v{cc[r]}")
        a(f"v_mul_f32 v{rv[4+r]}, v{t1}, v{cc[r]}")
    for i in range(8):
        a(f"v_cos_f32 v{t2c[i]}, v{rv[i]}")
        a(f"v_sin_f32 v{t2s[i]}, v{rv[i]}")
    R.release(mk)
    rd = R.alloc()
    a(f"v_lshlrev_b32 v{rd}, 9, v{g}")
    a(f"v_lshl_add_u32 v{rd}, v{n15}, 4, v{rd}")
    A = [[R.alloc(4, 4) for _ in range(4)] for _ in range(2)]
    a("s_waitcnt vmcnt(2)")
    a("s_barrier")
    for t in range(4):
        for at in range(2):
            a(f"ds_read_b128 {vr(A[at][t],4)}, v{rd} offset:{t*2048+at*256}")
    Dr = [R.alloc(4, 4) for _ in range(2)]; Di = [R.alloc(4, 4) for _ in range(2)]
    for t in range(4):
        a(f"s_waitcnt lgkmcnt({6-2*t})")
        for at in range(2):
            a(f"v_mfma_f32_16x16x32_bf16 {vr(Dr[at],4)}, {vr(A[at][t],4)}, {vr(F64r[t],4)}, " + ("0" if t == 0 else vr(Dr[at],4)))
            a(f"v_mfma_f32_16x16x32_bf16 {vr(Di[at],4)}, {vr(A[at][t],4)}, {vr(F64i[t],4)}, " + ("0" if t == 0 else vr(Di[at],4)))
    Tr = [R.alloc() for _ in range(8)]; Ti = [R.alloc() for _ in range(8)]
    dre = [Dr[0]+r for r in range(4)] + [Dr[1]+r for r in range(4)]
    dim_ = [Di[0]+r for r in range(4)] + [Di[1]+r for r in range(4)]
    cmul_tw(a, Tr, Ti, dre, dim_, t1c, t1s)
    Pr = R.alloc(4, 4); Pi = R.alloc(4, 4)
    def pack8(dst, src):
        for k in range(4): a(f"v_cvt_pk_bf16_f32 v{dst+k}, v{src[2*k]}, v{src[2*k+1]}")
    pack8(Pr, Tr); pack8(Pi, Ti)
    for m in range(2):
        a(f"v_mfma_f32_16x16x32_bf16 {vr(Dr[m],4)}, {vr(Co[m],4)}, {vr(Pr,4)}, 0")
        a(f"v_mfma_f32_16x16x32_bf16 {vr(Di[m],4)}, {vr(Co[m],4)}, {vr(Pi,4)}, 0")
    for m in range(2):
        a(f"v_mfma_f32_16x16x32_bf16 {vr(Dr[m],4)}, {vr(Si[m],4)}, {vr(Pi,4)}, {vr(Dr[m],4)}")
        a(f"v_mfma_f32_16x16x32_bf16 {vr(Di[m],4)}, {vr(Ns[m],4)}, {vr(Pr,4)}, {vr(Di[m],4)}")
    wr = [R.alloc() for _ in range(8)]; wi = [R.alloc() for _ in range(8)]
    a("s_waitcnt vmcnt(0)")
    for m in range(2):
        for r in range(4):
            a(f"v_lshlrev_b32 v{wr[4*m+r]}, 16, v{Wv[m]+r}")
            a(f"v_and_b32 v{wi[4*m+r]}, 0xffff0000, v{Wv[m]+r}")
    for i in range(8):
        a(f"v_mul_f32 v{Tr[i]}, v{dre[i]}, v{wr[i]}")
        a(f"v_mul_f32 v{Ti[i]}, -v{dre[i]}, v{wi[i]}")
    for i in range(8):
        a(f"v_fma_f32 v{Tr[i]}, -v{dim_[i]}, v{wi[i]}, v{Tr[i]}")
        a(f"v_fma_f32 v{Ti[i]}, -v{dim_[i]}, v{wr[i]}, v{Ti[i]}")
    pack8(Pr, Tr); pack8(Pi, Ti)
    for m in range(2):
        a(f"v_mfma_f32_16x16x32_bf16 {vr(Dr[m],4)}, {vr(Pr,4)}, {vr(Co[m],4)}, 0")
        a(f"v_mfma_f32_16x16x32_bf16 {vr(Di[m],4)}, {vr(Pi,4)}, {vr(Co[m],4)}, 0")
    for m in range(2):
        a(f"v_mfma_f32_16x16x32_bf16 {vr(Dr[m],4)}, {vr(Pi,4)}, {vr(Si[m],4)}, {vr(Dr[m],4)}")
        a(f"v_mfma_f32_16x16x32_bf16 {vr(Di[m],4)}, {vr(Pr,4)}, {vr(Ns[m],4)}, {vr(Di[m],4)}")
    cmul_tw(a, Tr, Ti, dre, dim_, t2c, t2s)
    E = [R.alloc(4, 4) for _ in range(2)]
    for m in range(2):
        for r in range(4):
            a(f"v_cvt_pk_bf16_f32 v{E[m]+r}, v{Tr[4*m+r]}, v{Ti[4*m+r]}")
    wa = R.alloc()
    a("s_lshl_b32 s23, s16, 10\ns_add_u32 s23, s23, 8192")
    a(f"v_add_u32 v{wa}, s23, v{voff16}")
    a(f"ds_write_b128 v{wa}, {vr(E[0],4)}")
    a(f"ds_write_b128 v{wa}, {vr(E[1],4)} offset:4096")
    a("s_waitcnt lgkmcnt(0)")
    a("s_barrier")
    for t in range(4):
        for m in range(2):
            a(f"ds_read_b128 {vr(A[m][t],4)}, v{voff16} offset:{8192 + (m*4+t)*1024}")
    for t in range(4):
        a(f"s_waitcnt lgkmcnt({6-2*t})")
        for m in range(2):
            a(f"v_mfma_f32_16x16x32_bf16 {vr(Dr[m],4)}, {vr(A[m][t],4)}, {vr(F64r[t],4)}, " + ("0" if t == 0 else vr(Dr[m],4)))
            a(f"v_mfma_f32_16x16x32_bf16 {vr(Di[m],4)}, {vr(A[m][t],4)}, {vr(F64i[t],4)}, " + ("0" if t == 0 else vr(Di[m],4)))
    so = R.alloc()
    a(f"v_add_u32 v{t0}, s22, v{n15}")
    a(f"v_lshlrev_b32 v{so}, 7, v{t0}")
    a(f"v_lshl_add_u32 v{so}, v{g}, 4, v{so}")
    for m in range(2):
        for r in range(4):
            a(f"v_cvt_pk_bf16_f32 v{E[m]+r}, v{Dr[m]+r}, -v{Di[m]+r}")
    a(f"s_add_u32 s24, s17, {M.OFF_Y}")
    a(f"buffer_store_dwordx4 {vr(E[0],4)}, v{so}, s[40:43], s24 offen")
    a(f"buffer_store_dwordx4 {vr(E[1],4)}, v{so}, s[40:43], s24 offen offset:64")
    a(f"L_{name}_end:")
    a("s_endpgm")
    a.raw(kernel_desc(name, R.hi, 96))
    return R.hi


def k3(a, name):
    a.raw(kernel_head(name))
    R = Regs(1, 256)
    a("s_cmp_ge_u32 s2, 256")
    a(f"s_cbranch_scc1 L_{name}_end")
    a("s_load_dwordx2 s[4:5], s[0:1], 0")
    a("s_load_dwordx2 s[14:15], s[0:1], 72")
    lane = R.alloc(); n15 = R.alloc(); g = R.alloc(); t0 = R.alloc(); t1 = R.alloc(); t2 = R.alloc()
    a(f"v_and_b32 v{lane}, 63, v0")
    a(f"v_lshrrev_b32 v{t0}, 6, v0")
    a(f"v_and_b32 v{n15}, 15, v0")
    a(f"v_readfirstlane_b32 s16, v{t0}")
    a(f"v_bfe_u32 v{g}, v0, 4, 2")
    a("s_lshr_b32 s17, s2, 5\ns_lshl_b32 s17, s17, 3\ns_and_b32 s18, s2, 7\ns_add_u32 s17, s17, s18")
    a("s_lshl_b32 s17, s17, 5\ns_lshr_b32 s18, s2, 3\ns_and_b32 s18, s18, 3\ns_lshl_b32 s18, s18, 3\ns_add_u32 s17, s17, s18")
    ydma = R.alloc()
    a(f"v_lshrrev_b32 v{t0}, 1, v{lane}")
    a(f"s_mov_b32 s58, {CS}")
    a(f"v_mul_lo_u32 v{ydma}, v{t0}, s58")
    a(f"v_and_b32 v{t0}, 1, v{lane}")
    a(f"v_lshl_add_u32 v{ydma}, v{t0}, 4, v{ydma}")
    a(f"s_mul_i32 s19, s16, {64*CS}")
    a("s_lshl_b32 s20, s17, 2")
    a("s_add_u32 s19, s19, s20")
    a(f"s_add_u32 s19, s19, {M.OFF_Y}")
    a("s_lshl_b32 s21, s16, 11")
    xo = R.alloc()
    a(f"v_lshlrev_b32 v{xo}, 6, v{n15}")
    a(f"v_lshl_add_u32 v{xo}, v{g}, 3, v{xo}")
    a("s_lshl_b32 s22, s16, 1\ns_add_u32 s22, s22, s17")
    a("s_lshl_b32 s23, s22, 10")
    a("s_waitcnt lgkmcnt(0)")
    srd(a, 40, 14, M.WS_USED)
    srd(a, 28, 4, S_ * D_ * 2)
    a("s_mov_b32 m0, s21")
    a(f"buffer_load_dwordx4 v{ydma}, s[40:43], s19 offen lds")
    a("s_add_u32 m0, s21, 1024")
    a(f"s_add_u32 s19, s19, {32*CS}")
    a(f"buffer_load_dwordx4 v{ydma}, s[40:43], s19 offen lds")
    X = [[R.alloc(2, 2) for _ in range(2)] for _ in range(2)]
    for rr in range(2):
        for nt in range(2):
            a(f"buffer_load_dwordx2 {vr(X[rr][nt],2)}, v{xo}, s[28:31], s23 offen offset:{rr*1024+nt*32}")
    nf = R.alloc(); gf4 = R.alloc()
    a(f"v_cvt_f32_u32 v{nf}, v{n15}")
    a(f"v_lshlrev_b32 v{t1}, 2, v{g}")
    a(f"v_cvt_f32_u32 v{gf4}, v{t1}")
    BAr = [R.alloc(4, 4) for _ in range(2)]; BAi = [R.alloc(4, 4) for _ in range(2)]; BB = R.alloc(4, 4)
    tc = [R.alloc() for _ in range(8)]; ts = [R.alloc() for _ in range(8)]
    mk = R.mark()
    dd = [R.alloc() for _ in range(4)]; rv = [R.alloc() for _ in range(8)]
    cc = [R.alloc() for _ in range(4)]; ss = [R.alloc() for _ in range(4)]
    for e in range(4):
        a(f"v_add_f32 v{dd[e]}, {float(e)}, v{gf4}") if e else a(f"v_mov_b32 v{dd[e]}, v{gf4}")
    a(f"v_mul_f32 v{t0}, {fhex(1/32)}, v{nf}")
    for i in range(4): a(f"v_mul_f32 v{rv[i]}, v{t0}, v{dd[i]}")
    for i in range(4):
        a(f"v_cos_f32 v{cc[i]}, v{rv[i]}")
        a(f"v_sin_f32 v{ss[i]}, v{rv[i]}")
    for i in range(4):
        a(f"v_cvt_pk_bf16_f32 v{BAr[0]+i}, v{cc[i]}, -v{ss[i]}")
        a(f"v_cvt_pk_bf16_f32 v{BAi[0]+i}, v{ss[i]}, v{cc[i]}")
    for i in range(4):
        if i & 1:
            a(f"v_xor_b32 v{BAr[1]+i}, 0x80008000, v{BAr[0]+i}")
            a(f"v_xor_b32 v{BAi[1]+i}, 0x80008000, v{BAi[0]+i}")
        else:
            a(f"v_mov_b32 v{BAr[1]+i}, v{BAr[0]+i}")
            a(f"v_mov_b32 v{BAi[1]+i}, v{BAi[0]+i}")
    a(f"v_mul_f32 v{t0}, {fhex(1/512)}, v{nf}")
    a(f"v_add_f32 v{t1}, {fhex(16/512)}, v{t0}")
    for r in range(4):
        a(f"v_mul_f32 v{rv[r]}, v{t0}, v{dd[r]}")
        a(f"v_mul_f32 v{rv[4+r]}, v{t1}, v{dd[r]}")
    for i in range(8):
        a(f"v_cos_f32 v{tc[i]}, v{rv[i]}")
        a(f"v_sin_f32 v{ts[i]}, -v{rv[i]}")
    a(f"v_mul_f32 v{t0}, {fhex(1/16)}, v{nf}")
    for i in range(4): a(f"v_mul_f32 v{rv[i]}, v{t0}, v{dd[i]}")
    for i in range(4):
        a(f"v_cos_f32 v{cc[i]}, v{rv[i]}")
        a(f"v_sin_f32 v{ss[i]}, v{rv[i]}")
    a(f"v_cvt_pk_bf16_f32 v{BB}, v{cc[0]}, v{cc[1]}")
    a(f"v_cvt_pk_bf16_f32 v{BB+1}, v{cc[2]}, v{cc[3]}")
    a(f"v_cvt_pk_bf16_f32 v{BB+2}, -v{ss[0]}, -v{ss[1]}")
    a(f"v_cvt_pk_bf16_f32 v{BB+3}, -v{ss[2]}, -v{ss[3]}")
    R.release(mk)
    rd = [R.alloc(), R.alloc()]
    a(f"v_lshlrev_b32 v{rd[0]}, 5, v{n15}")
    a(f"v_lshl_add_u32 v{rd[0]}, v{g}, 11, v{rd[0]}")
    a("s_lshl_b32 s24, s16, 3")
    a(f"v_add_u32 v{rd[0]}, s24, v{rd[0]}")
    a(f"v_add_u32 v{rd[1]}, 4, v{rd[0]}")
    xno = R.alloc()
    a(f"v_lshrrev_b32 v{t0}, 1, v{g}")
    a(f"v_lshl_add_u32 v{t0}, v{n15}, 1, v{t0}")
    a(f"v_lshlrev_b32 v{xno}, 10, v{t0}")
    a(f"v_and_b32 v{t0}, 1, v{g}")
    a(f"v_lshl_add_u32 v{xno}, v{t0}, 9, v{xno}")
    a("s_lshr_b32 s25, s22, 5\ns_lshl_b32 s25, s25, 15\ns_and_b32 s26, s22, 31\ns_lshl_b32 s26, s26, 4\ns_add_u32 s25, s25, s26")
    a(f"s_add_u32 s25, s25, {M.OFF_XN}")
    a(f"s_add_u32 s26, s23, {M.OFF_H}")
    A = [R.alloc(4, 4) for _ in range(2)]
    a("s_waitcnt vmcnt(4)")
    a("s_barrier")
    for rr in range(2):
        a(f"ds_read2st64_b32 {vr(A[rr],2)}, v{rd[rr]} offset0:0 offset1:2")
        a(f"ds_read2st64_b32 {vr(A[rr]+2,2)}, v{rd[rr]} offset0:4 offset1:6")
    a("s_waitcnt lgkmcnt(0)")
    for rr in range(2):
        a(f"v_readlane_b32 s{60+rr}, v{A[rr]}, 0")
    for rr in range(2):
        a(f"v_writelane_b32 v{A[rr]}, 0, 0")
        a(f"s_lshl_b32 s{60+rr}, s{60+rr}, 16")
    V = [[[R.alloc(4, 4) for _ in range(2)] for _ in range(2)] for _ in range(2)]
    for rr in range(2):
        for nt in range(2):
            a(f"v_mfma_f32_16x16x32_bf16 {vr(V[rr][nt][0],4)}, {vr(A[rr],4)}, {vr(BAr[nt],4)}, 0")
            a(f"v_mfma_f32_16x16x32_bf16 {vr(V[rr][nt][1],4)}, {vr(A[rr],4)}, {vr(BAi[nt],4)}, 0")
    Tr = [R.alloc() for _ in range(8)]; Ti = [R.alloc() for _ in range(8)]
    PA = [[R.alloc(4, 4) for _ in range(2)] for _ in range(2)]
    Yd = [[R.alloc(4, 4) for _ in range(2)] for _ in range(2)]
    for rr in range(2):
        sre = [V[rr][0][0]+r for r in range(4)] + [V[rr][1][0]+r for r in range(4)]
        sim = [V[rr][0][1]+r for r in range(4)] + [V[rr][1][1]+r for r in range(4)]
        cmul_tw(a, Tr, Ti, sre, sim, tc, ts)
        for nt in range(2):
            a(f"v_cvt_pk_bf16_f32 v{PA[rr][nt]}, v{Tr[4*nt]}, v{Tr[4*nt+1]}")
            a(f"v_cvt_pk_bf16_f32 v{PA[rr][nt]+1}, v{Tr[4*nt+2]}, v{Tr[4*nt+3]}")
            a(f"v_cvt_pk_bf16_f32 v{PA[rr][nt]+2}, v{Ti[4*nt]}, v{Ti[4*nt+1]}")
            a(f"v_cvt_pk_bf16_f32 v{PA[rr][nt]+3}, v{Ti[4*nt+2]}, v{Ti[4*nt+3]}")
        for nt in range(2):
            a(f"v_mfma_f32_16x16x32_bf16 {vr(Yd[rr][nt],4)}, {vr(PA[rr][nt],4)}, {vr(BB,4)}, 0")
    Hv = [[R.alloc() for _ in range(8)] for _ in range(2)]
    a("s_waitcnt vmcnt(0)")
    for rr in range(2):
        for nt in range(2):
            for k in range(2):
                a(f"v_lshlrev_b32 v{Hv[rr][4*nt+2*k]}, 16, v{X[rr][nt]+k}")
                a(f"v_and_b32 v{Hv[rr][4*nt+2*k+1]}, 0xffff0000, v{X[rr][nt]+k}")
    for rr in range(2):
        for i in range(8):
            if i & 1: a(f"v_subrev_f32 v{Hv[rr][i]}, s{60+rr}, v{Hv[rr][i]}")
            else: a(f"v_add_f32 v{Hv[rr][i]}, s{60+rr}, v{Hv[rr][i]}")
    for rr in range(2):
        for i in range(8):
            a(f"v_add_f32 v{Hv[rr][i]}, v{Hv[rr][i]}, v{Yd[rr][i>>2]+(i&3)}")
    sm = [R.alloc(), R.alloc()]; sq = [R.alloc(), R.alloc()]
    for rr in range(2):
        a(f"v_add_f32 v{sm[rr]}, v{Hv[rr][0]}, v{Hv[rr][1]}")
        a(f"v_mul_f32 v{sq[rr]}, v{Hv[rr][0]}, v{Hv[rr][0]}")
    for i in range(1, 8):
        for rr in range(2):
            if i > 1: a(f"v_add_f32 v{sm[rr]}, v{sm[rr]}, v{Hv[rr][i]}")
            a(f"v_fma_f32 v{sq[rr]}, v{Hv[rr][i]}, v{Hv[rr][i]}, v{sq[rr]}")
    Hp = [[R.alloc(2, 2) for _ in range(2)] for _ in range(2)]
    for rr in range(2):
        for nt in range(2):
            for k in range(2):
                a(f"v_cvt_pk_bf16_f32 v{Hp[rr][nt]+k}, v{Hv[rr][4*nt+2*k]}, v{Hv[rr][4*nt+2*k+1]}")
    for rr in range(2):
        for nt in range(2):
            a(f"buffer_store_dwordx2 {vr(Hp[rr][nt],2)}, v{xo}, s[40:43], s26 offen offset:{rr*1024+nt*32}")
    wave_reduce_add(a, sm + sq)
    a(f"s_mov_b32 s27, {fhex(1/512)}")
    for rr in range(2):
        a(f"v_mul_f32 v{sm[rr]}, s27, v{sm[rr]}")
    for rr in range(2):
        a(f"v_mul_f32 v{t0+rr}, v{sm[rr]}, v{sm[rr]}")
    for rr in range(2):
        a(f"v_fma_f32 v{sq[rr]}, v{sq[rr]}, s27, -v{t0+rr}")
    for rr in range(2):
        a(f"v_max_f32 v{sq[rr]}, 0, v{sq[rr]}")
    for rr in range(2):
        a(f"v_add_f32 v{sq[rr]}, {fhex(1e-5)}, v{sq[rr]}")
    for rr in range(2):
        a(f"v_rsq_f32 v{sq[rr]}, v{sq[rr]}")
    for rr in range(2):
        a(f"v_mul_f32 v{sm[rr]}, -v{sm[rr]}, v{sq[rr]}")
    for rr in range(2):
        a(f"v_readlane_b32 s{62+rr}, v{sq[rr]}, 63")
        a(f"v_readlane_b32 s{64+rr}, v{sm[rr]}, 63")
    for rr in range(2):
        a(f"v_mov_b32 v{sm[rr]}, s{64+rr}")
    for rr in range(2):
        for i in range(8):
            a(f"v_fma_f32 v{Hv[rr][i]}, v{Hv[rr][i]}, s{62+rr}, v{sm[rr]}")
    Q = [R.alloc(4, 4) for _ in range(2)]
    for rr in range(2):
        for k in range(4):
            a(f"v_cvt_pk_bf16_f32 v{Q[rr]+k}, v{Hv[rr][2*k]}, v{Hv[rr][2*k+1]}")
    for rr in range(2):
        a(f"buffer_store_dwordx4 {vr(Q[rr],4)}, v{xno}, s[40:43], s25 offen offset:{rr*16}")
    a(f"L_{name}_end:")
    a("s_endpgm")
    a.raw(kernel_desc(name, R.hi, 96))
    return R.hi


LOG2E = 1.4426950408889634
def mish_ops(acc, tmp, out_pk):
    ops = []
    for h in range(2):
        z = [acc + 8*h + i for i in range(8)]
        for i in range(8): ops.append(f"v_mul_f32 v{tmp[i]}, {fhex(LOG2E)}, v{z[i]}")
        for i in range(8): ops.append(f"v_exp_f32 v{tmp[i]}, v{tmp[i]}")
        for i in range(8): ops.append(f"v_add_f32 v{tmp[i]}, 1.0, v{tmp[i]}")
        for i in range(8): ops.append(f"v_fma_f32 v{tmp[i]}, v{tmp[i]}, v{tmp[i]}, 1.0")
        for i in range(8): ops.append(f"v_rcp_f32 v{tmp[i]}, v{tmp[i]}")
        for i in range(8): ops.append(f"v_mul_f32 v{tmp[i]}, v{z[i]}, v{tmp[i]}")
        for i in range(8): ops.append(f"v_fma_f32 v{tmp[i]}, v{tmp[i]}, -2.0, v{z[i]}")
        for k in range(4): ops.append(f"v_cvt_pk_bf16_f32 v{out_pk+4*h+k}, v{tmp[2*k]}, v{tmp[2*k+1]}")
    return ops

def k4(a, name):
    a.raw(kernel_head(name))
    R = Regs(1, 256)
    a("s_cmp_ge_u32 s2, 224")
    a(f"s_cbranch_scc1 L_{name}_end")
    a("s_load_dwordx4 s[4:7], s[0:1], 32")
    a("s_load_dwordx2 s[14:15], s[0:1], 72")
    lane = R.alloc(); t0 = R.alloc(); t1 = R.alloc(); t2 = R.alloc(); voff16 = R.alloc()
    a(f"v_and_b32 v{lane}, 63, v0")
    a(f"v_lshrrev_b32 v{t0}, 6, v0")
    a(f"v_lshlrev_b32 v{voff16}, 4, v{lane}")
    a(f"v_readfirstlane_b32 s16, v{t0}")
    a("s_and_b32 s17, s2, 7\ns_lshr_b32 s18, s2, 3")
    a("s_lshr_b32 s19, s17, 1\ns_lshl_b32 s19, s19, 2\ns_and_b32 s20, s18, 3\ns_add_u32 s19, s19, s20")
    a("s_and_b32 s17, s17, 1\ns_mul_i32 s17, s17, 7\ns_lshr_b32 s18, s18, 2\ns_add_u32 s17, s17, s18")
    a("s_lshl_b32 s19, s19, 2\ns_add_u32 s19, s19, s16")
    a(f"s_lshl_b32 s20, s19, 15\ns_add_u32 s20, s20, {M.OFF_XN}")
    a(f"s_mul_i32 s21, s19, {112*1024}\ns_lshl_b32 s22, s17, 13\ns_add_u32 s21, s21, s22\ns_add_u32 s21, s21, {M.OFF_ACT}")
    wdma = R.alloc()
    a(f"v_lshrrev_b32 v{t0}, 4, v{lane}")
    a(f"v_lshlrev_b32 v{t1}, 2, v{t0}")
    a(f"v_and_b32 v{t2}, 15, v{lane}")
    a(f"v_xor_b32 v{t1}, v{t1}, v{t2}")
    a(f"v_lshlrev_b32 v{t1}, 4, v{t1}")
    a(f"s_movk_i32 s23, 3584")
    a(f"v_mul_lo_u32 v{wdma}, v{t0}, s23")
    a(f"v_add_u32 v{wdma}, v{wdma}, v{t1}")
    a(f"s_lshl_b32 s24, s17, 8\ns_mul_i32 s25, s16, {4*3584}\ns_add_u32 s24, s24, s25")
    a("s_lshl_b32 s25, s16, 10")
    bo = R.alloc()
    a(f"v_and_b32 v{t0}, 31, v{lane}")
    a(f"s_lshl_b32 s26, s17, 7")
    a(f"v_add_u32 v{t0}, s26, v{t0}")
    a(f"v_lshlrev_b32 v{bo}, 1, v{t0}")
    a(f"v_cmp_lt_u32 vcc, 31, v{lane}")
    a(f"v_mov_b32 v{t1}, 0x7ffffff0")
    a(f"v_cndmask_b32 v{bo}, v{bo}, v{t1}, vcc")
    a("s_waitcnt lgkmcnt(0)")
    srd(a, 40, 14, M.WS_USED)
    srd(a, 44, 4, D_ * F_ * 2)
    srd(a, 48, 6, F_ * 2)
    XB = [R.alloc(4, 4) for _ in range(32)]
    bias = [R.alloc() for _ in range(4)]
    def issue_chunk(c):
        for i in range(8):
            n4 = 8*c + i
            a(f"s_add_u32 m0, s25, {n4*4096}")
            a(f"s_add_u32 s27, s24, {n4*16*3584}")
            a(f"buffer_load_dwordx4 v{wdma}, s[44:47], s27 offen lds")
            u = 8*c + i
            a(f"s_add_u32 s28, s20, {(u//4)*4096}") if u % 4 == 0 else None
            a(f"buffer_load_dwordx4 {vr(XB[u],4)}, v{voff16}, s[40:43], s28 offen offset:{(u%4)*1024}")
    for ft in range(4):
        a(f"buffer_load_ushort v{bias[ft]}, v{bo}, s[48:51], 0 offen offset:{ft*64}")
    for c in range(3): issue_chunk(c)
    ab = [R.alloc(), R.alloc()]; ab0 = R.alloc()
    a(f"v_lshrrev_b32 v{t0}, 5, v{lane}")
    a(f"v_bfe_u32 v{t1}, v{lane}, 2, 2")
    a(f"v_lshl_add_u32 v{t0}, v{t0}, 2, v{t1}")
    a(f"v_lshlrev_b32 v{ab0}, 8, v{t0}")
    a(f"v_lshl_add_u32 v{ab0}, v{t1}, 6, v{ab0}")
    a(f"v_bfe_u32 v{t1}, v{lane}, 4, 1")
    a(f"v_lshl_add_u32 v{ab0}, v{t1}, 5, v{ab0}")
    a(f"v_and_b32 v{t1}, 3, v{lane}")
    a(f"v_lshl_add_u32 v{ab0}, v{t1}, 3, v{ab0}")
    bA = R.alloc(4, 4); one = R.alloc(4, 4)
    a(f"v_mov_b32 v{bA+1}, 0\nv_mov_b32 v{bA+2}, 0\nv_mov_b32 v{bA+3}, 0")
    a(f"v_mov_b32 v{one}, 0x3f80\nv_mov_b32 v{one+1}, 0\nv_mov_b32 v{one+2}, 0\nv_mov_b32 v{one+3}, 0")
    acc = [R.alloc(16, 4), R.alloc(16, 4)]
    NR = 4
    ring = [R.alloc(4, 4) for _ in range(NR)]
    tmp = [R.alloc() for _ in range(8)]
    pk = R.alloc(8, 4)
    def rd(ft, u, slot):
        base = ab[u >> 4]
        off = (32*((u & 15) >> 1) + 8*(u & 1)) * 256
        return [f"ds_read_b64_tr_b16 {vr(ring[slot],2)}, v{base} offset:{off}",
                f"ds_read_b64_tr_b16 {vr(ring[slot]+2,2)}, v{base} offset:{off+4096}"]
    def epi_ops(ft):
        ops = mish_ops(acc[ft & 1], tmp, pk)
        res = []
        half = len(ops) // 2
        res += ops[:half]
        res.append(f"buffer_store_dwordx4 {vr(pk,4)}, v{voff16}, s[40:43], s21 offen offset:{(2*ft)*1024}" if ft < 2 else
                   f"buffer_store_dwordx4 {vr(pk,4)}, v{voff16}, s[40:43], s29 offen offset:{(2*(ft-2))*1024}")
        res += ops[half:]
        res.append(f"buffer_store_dwordx4 {vr(pk+4,4)}, v{voff16}, s[40:43], s21 offen offset:{(2*ft+1)*1024}" if ft < 2 else
                   f"buffer_store_dwordx4 {vr(pk+4,4)}, v{voff16}, s[40:43], s29 offen offset:{(2*(ft-2)+1)*1024}")
        return res
    a("s_add_u32 s29, s21, 4096")
    nstores = 0
    for ft in range(4):
        a(f"v_xor_b32 v{ab[0]}, {ft<<6}, v{ab0}")
        a(f"v_add_u32 v{ab[1]}, 0x10000, v{ab[0]}")
        fill = epi_ops(ft-1) if ft > 0 else []
        if ft == 0:
            a("s_waitcnt vmcnt(48)")
        a(f"v_mov_b32 v{bA}, v{bias[ft]}")
        a(f"v_mfma_f32_32x32x16_bf16 {vr(acc[ft&1],16)}, {vr(bA,4)}, {vr(one,4)}, 0")
        pend = 0
        for u in range(32):
            if ft == 0 and u % 8 == 0:
                c = u // 8
                if c == 0:
                    a("s_waitcnt vmcnt(32)")
                    a("s_barrier")
                    issue_chunk(3)
                elif c < 3:
                    a(f"s_waitcnt vmcnt({16*(3-c)})")
                    a("s_barrier")
                else:
                    a("s_waitcnt vmcnt(0)")
                    a("s_barrier")
            lim = min(u + NR - 1, 31)
            if ft == 0: lim = min(lim, (u // 8) * 8 + 7)
            while pend <= lim:
                for l in rd(ft, pend, pend % NR): a(l)
                pend += 1
            a(f"s_waitcnt lgkmcnt({2*(pend-1-u)})")
            a(f"v_mfma_f32_32x32x16_bf16 {vr(acc[ft&1],16)}, {vr(ring[u%NR],4)}, {vr(XB[u],4)}, {vr(acc[ft&1],16)}")
            if u >= 2:
                k = -(-len(fill) // (32 - u))
                for _ in range(min(k, len(fill))): a(fill.pop(0))
        assert not fill
    for l in epi_ops(3): a(l)
    a(f"L_{name}_end:")
    a("s_endpgm")
    a.raw(kernel_desc(name, R.hi, 96))
    return R.hi


def k5(a, name, PD=8):
    a.raw(kernel_head(name))
    R = Regs(1, 256)
    a("s_cmp_ge_u32 s2, 256")
    a(f"s_cbranch_scc1 L_{name}_end")
    a("s_load_dwordx4 s[4:7], s[0:1], 48")
    a("s_load_dwordx2 s[14:15], s[0:1], 72")
    lane = R.alloc(); t0 = R.alloc(); t1 = R.alloc(); t2 = R.alloc(); voff16 = R.alloc()
    a(f"v_and_b32 v{lane}, 63, v0")
    a(f"v_lshrrev_b32 v{t0}, 6, v0")
    a(f"v_lshlrev_b32 v{voff16}, 4, v{lane}")
    a(f"v_readfirstlane_b32 s16, v{t0}")
    a("s_and_b32 s17, s2, 7\ns_lshl_b32 s17, s17, 2\ns_lshr_b32 s18, s2, 3\ns_and_b32 s18, s18, 3\ns_add_u32 s17, s17, s18")
    a("s_lshr_b32 s18, s2, 5")
    a(f"s_mul_i32 s19, s17, {2*114688}\ns_mul_i32 s20, s16, {28*1024}\ns_add_u32 s19, s19, s20\ns_add_u32 s19, s19, {M.OFF_ACT}")
    a(f"s_add_u32 s20, s19, 114688")
    a(f"s_lshl_b32 s21, s18, 7\ns_mul_i32 s22, s16, {16*28*1024}\ns_add_u32 s21, s21, s22")
    a(f"s_mul_i32 s22, s16, {PD*2048}")
    wdma = R.alloc()
    a(f"v_lshrrev_b32 v{t0}, 3, v{lane}")
    a(f"v_bfe_u32 v{t1}, v{lane}, 4, 1")
    a(f"v_lshlrev_b32 v{t1}, 2, v{t1}")
    a(f"v_and_b32 v{t2}, 7, v{lane}")
    a(f"v_xor_b32 v{t1}, v{t1}, v{t2}")
    a(f"v_lshlrev_b32 v{t1}, 4, v{t1}")
    a(f"v_lshl_add_u32 v{wdma}, v{t0}, 10, v{t1}")
    eo = R.alloc()
    a(f"v_lshrrev_b32 v{t0}, 2, v{lane}")
    a(f"v_lshlrev_b32 v{eo}, 10, v{t0}")
    a(f"v_and_b32 v{t1}, 3, v{lane}")
    a(f"v_lshl_add_u32 v{eo}, v{t1}, 5, v{eo}")
    a("s_lshl_b32 s23, s17, 6\ns_lshl_b32 s24, s16, 4\ns_add_u32 s23, s23, s24\ns_lshl_b32 s23, s23, 10\ns_lshl_b32 s24, s18, 7\ns_add_u32 s23, s23, s24")
    a(f"s_add_u32 s24, s23, {M.OFF_H}")
    a("s_waitcnt lgkmcnt(0)")
    srd(a, 40, 14, M.WS_USED)
    srd(a, 44, 4, D_ * F_ * 2)
    srd(a, 48, 6, S_ * D_ * 2)
    Hq = [R.alloc(4, 4) for _ in range(2)]
    a(f"buffer_load_dwordx4 {vr(Hq[0],4)}, v{eo}, s[40:43], s24 offen")
    a(f"buffer_load_dwordx4 {vr(Hq[1],4)}, v{eo}, s[40:43], s24 offen offset:16")
    B = [[R.alloc(4, 4) for _ in range(2)] for _ in range(PD)]
    def issue(v):
        sl = v % PD
        a(f"s_add_u32 m0, s22, {sl*2048}")
        a(f"s_add_u32 s25, s21, {v*16*1024}")
        a(f"buffer_load_dwordx4 v{wdma}, s[44:47], s25 offen lds")
        a(f"s_add_u32 m0, s22, {sl*2048+1024}")
        a(f"s_add_u32 s25, s21, {v*16*1024+8192}")
        a(f"buffer_load_dwordx4 v{wdma}, s[44:47], s25 offen lds")
        if v % 4 == 0:
            a(f"s_add_u32 s26, s19, {v*1024}")
            a(f"s_add_u32 s27, s20, {v*1024}")
        a(f"buffer_load_dwordx4 {vr(B[sl][0],4)}, v{voff16}, s[40:43], s26 offen offset:{(v%4)*1024}")
        a(f"buffer_load_dwordx4 {vr(B[sl][1],4)}, v{voff16}, s[40:43], s27 offen offset:{(v%4)*1024}")
    for v in range(PD): issue(v)
    ab = [R.alloc(), R.alloc()]
    a(f"v_lshrrev_b32 v{t0}, 5, v{lane}")
    a(f"v_bfe_u32 v{t1}, v{lane}, 2, 2")
    a(f"v_lshl_add_u32 v{t0}, v{t0}, 2, v{t1}")
    a(f"v_lshlrev_b32 v{ab[0]}, 7, v{t0}")
    a(f"v_lshrrev_b32 v{t1}, 1, v{t1}")
    a(f"v_lshl_add_u32 v{ab[0]}, v{t1}, 6, v{ab[0]}")
    a(f"v_bfe_u32 v{t1}, v{lane}, 4, 1")
    a(f"v_lshl_add_u32 v{ab[0]}, v{t1}, 5, v{ab[0]}")
    a(f"v_and_b32 v{t1}, 3, v{lane}")
    a(f"v_lshl_add_u32 v{ab[0]}, v{t1}, 3, v{ab[0]}")
    a(f"v_add_u32 v{ab[0]}, s22, v{ab[0]}")
    a(f"v_xor_b32 v{ab[1]}, 64, v{ab[0]}")
    acc = [[R.alloc(16, 4) for _ in range(2)] for _ in range(2)]
    Af = [[R.alloc(4, 4) for _ in range(2)] for _ in range(2)]
    def rd(v):
        sl = v % PD
        for dt in range(2):
            a(f"ds_read_b64_tr_b16 {vr(Af[v&1][dt],2)}, v{ab[dt]} offset:{sl*2048}")
            a(f"ds_read_b64_tr_b16 {vr(Af[v&1][dt]+2,2)}, v{ab[dt]} offset:{sl*2048+1024}")
    NK = 28
    issued = PD
    def wait_step(v):
        a(f"s_waitcnt vmcnt({4*(issued-1-v)})")
    wait_step(0); rd(0)
    for v in range(NK):
        if v + 1 < NK:
            wait_step(v + 1); rd(v + 1)
            a("s_waitcnt lgkmcnt(4)")
        else:
            a("s_waitcnt lgkmcnt(0)")
        for dt in range(2):
            for m in range(2):
                a(f"v_mfma_f32_32x32x16_bf16 {vr(acc[dt][m],16)}, {vr(Af[v&1][dt],4)}, {vr(B[v%PD][m],4)}, " + ("0" if v == 0 else vr(acc[dt][m],16)))
        if issued < NK:
            issue(issued); issued += 1
    a("s_barrier")
    wa = R.alloc()
    a(f"v_and_b32 v{t0}, 31, v{lane}")
    a(f"v_mul_u32_u24 v{wa}, 272, v{t0}")
    a(f"v_lshrrev_b32 v{t0}, 5, v{lane}")
    a(f"v_lshl_add_u32 v{wa}, v{t0}, 4, v{wa}")
    a(f"s_mul_i32 s28, s16, 17408")
    a(f"v_add_u32 v{wa}, s28, v{wa}")
    for m in range(2):
        for dt in range(2):
            for q in range(4):
                a(f"ds_write_b128 v{wa}, {vr(acc[dt][m]+4*q,4)} offset:{m*32*272 + (32*dt+8*q)*4}")
    ra = R.alloc()
    a(f"v_lshrrev_b32 v{t0}, 2, v{lane}")
    a(f"s_lshl_b32 s28, s16, 4")
    a(f"v_add_u32 v{t0}, s28, v{t0}")
    a(f"v_mul_u32_u24 v{ra}, 272, v{t0}")
    a(f"v_and_b32 v{t1}, 3, v{lane}")
    a(f"v_lshl_add_u32 v{ra}, v{t1}, 6, v{ra}")
    a("s_waitcnt lgkmcnt(0)")
    a("s_barrier")
    Pq = [[B[p][0] + 0, B[p][1], B[p+4][0], B[p+4][1]] for p in range(4)]
    for p in range(4):
        for k in range(4):
            a(f"ds_read_b128 {vr(Pq[p][k],4)}, v{ra} offset:{p*17408 + k*16}")
    Hf = [acc[0][0] + i for i in range(16)]
    for h in range(2):
        for k in range(4):
            a(f"v_lshlrev_b32 v{Hf[8*h+2*k]}, 16, v{Hq[h]+k}")
            a(f"v_and_b32 v{Hf[8*h+2*k+1]}, 0xffff0000, v{Hq[h]+k}")
    for p in range(4):
        a(f"s_waitcnt lgkmcnt({4*(3-p)})")
        for k in range(4):
            for i in range(4):
                a(f"v_add_f32 v{Hf[4*k+i]}, v{Hf[4*k+i]}, v{Pq[p][k]+i}")
    O = [acc[1][0], acc[1][0] + 4]
    for h in range(2):
        for k in range(4):
            a(f"v_cvt_pk_bf16_f32 v{O[h]+k}, v{Hf[8*h+2*k]}, v{Hf[8*h+2*k+1]}")
    a(f"buffer_store_dwordx4 {vr(O[0],4)}, v{eo}, s[48:51], s23 offen")
    a(f"buffer_store_dwordx4 {vr(O[1],4)}, v{eo}, s[48:51], s23 offen offset:16")
    a(f"L_{name}_end:")
    a("s_endpgm")
    a.raw(kernel_desc(name, R.hi, 96))
    return R.hi

HEADER = """; sequential_preLN -> GFNet spectral mixing -> dense/mish MLP, hand-written for gfx950
"""
def build(kernels, launches):
    a = Asm()
    for (k, grid, block, lds) in launches:
        a.raw(f"; @launch kernel={k} grid=({grid},1,1) block=({block},1,1) lds={lds}")
    a.raw('.amdgcn_target "amdgcn-amd-amdhsa--gfx950"')
    for fn, name in kernels:
        hi = fn(a, name)
        print(f"{name}: vgprs {hi}", file=sys.stderr)
    return a.text()

if __name__ == "__main__":
    ks = [(k1, "k1_kernel", 256, 256, 16384), (k2, "k2_kernel", 256, 256, 16384),
          (k3, "k3_kernel", 256, 256, 8192),
          (k4, "k4_kernel", 224, 256, 131072),
          (k5, "k5_kernel", 256, 256, 69632)]
    txt = build([(k[0], k[1]) for k in ks], [k[1:] for k in ks])
    open(sys.argv[1] if len(sys.argv) > 1 else "out.s", "w").write(txt)
```

```python
import re, math

TRANS = ("v_exp_f32", "v_log_f32", "v_rcp_f32", "v_rsq_f32", "v_sqrt_f32", "v_sin_f32", "v_cos_f32", "v_rcp_iflag_f32")
def _regs(tok):
    tok = tok.strip()
    neg = tok.lstrip("-")
    m = re.match(r"^abs\((.*)\)$", neg) or re.match(r"^\|(.*)\|$", neg)
    if m: neg = m.group(1)
    m = re.match(r"^([vas])\[(\d+):(\d+)\]$", neg)
    if m:
        return {f"{m.group(1)}{i}" for i in range(int(m.group(2)), int(m.group(3)) + 1)}
    m = re.match(r"^([vas])(\d+)$", neg)
    if m: return {neg}
    if neg in ("vcc", "vcc_lo", "vcc_hi"): return {"vcc"}
    if neg in ("exec", "exec_lo", "exec_hi"): return {"exec"}
    if neg == "m0": return {"m0"}
    return set()

class Ins:
    def __init__(self, text):
        self.text = text
        t = text.split(";")[0].strip()
        parts = t.split(None, 1)
        self.op = parts[0]
        rest = parts[1] if len(parts) > 1 else ""
        ops, depth, cur = [], 0, ""
        for ch in rest:
            if ch == "[": depth += 1
            if ch == "]": depth -= 1
            if ch == "," and depth == 0:
                ops.append(cur.strip()); cur = ""
            else: cur += ch
        if cur.strip(): ops.append(cur.strip())
        self.mods = ""
        if ops:
            last = ops[-1].split(None, 1)
            if len(last) > 1 and not last[0].endswith(","):
                ops[-1] = last[0]; self.mods = last[1]
        self.ops = ops
        op = self.op
        self.is_mfma = op.startswith("v_mfma")
        self.is_valu = op.startswith("v_") and not self.is_mfma
        self.is_trans = any(op.startswith(x) for x in TRANS)
        self.is_dpp = self.is_valu and any(k in self.mods for k in ("quad_perm", "row_shr", "row_shl", "row_ror", "row_bcast", "row_mirror", "row_half_mirror", "wave_shr", "wave_shl", "row_newbcast"))
        self.is_vmem = op.startswith("buffer_") or op.startswith("global_") or op.startswith("flat_")
        self.is_ds = op.startswith("ds_")
        self.is_salu = op.startswith("s_")
        self.dst, self.src = set(), set()
        R = [_regs(o) for o in ops]
        if self.is_mfma:
            self.dst = R[0]; self.srcA = R[1]; self.srcB = R[2]; self.srcC = R[3]
            self.src = R[1] | R[2] | R[3]
            self.passes = 8 if "32x32x16" in op or "32x32x8" in op else 4
            if "_f32_16x16x4_f32" in op: self.passes = 8
            if "_f32_32x32x2_f32" in op: self.passes = 16
        elif self.is_valu:
            if op.startswith("v_cmp"):
                self.dst = R[0]; self.src = set().union(*R[1:])
            elif op.startswith("v_readlane") or op.startswith("v_readfirstlane"):
                self.dst = R[0]; self.src = set().union(*R[1:])
            elif op.startswith("v_permlane") and "swap" in op:
                self.dst = R[0] | R[1]; self.src = R[0] | R[1]
            elif op in ("v_add_co_u32", "v_sub_co_u32", "v_addc_co_u32", "v_add_co_u32_e32", "v_addc_co_u32_e32"):
                self.dst = R[0] | R[1]; self.src = set().union(*R[2:])
            else:
                self.dst = R[0]; self.src = set().union(*R[1:]) if len(R) > 1 else set()
                if op.startswith("v_fmac") or op.startswith("v_dot2c") or op.startswith("v_pk_fmac") or op.startswith("v_writelane") or self.is_dpp \
                   or op.startswith("v_accvgpr_write") and False:
                    self.src |= R[0]
                if op.startswith("v_cndmask") and len(ops) == 3: self.src.add("vcc")
        elif self.is_vmem:
            lds = " lds" in (" " + self.mods + " ") or " lds " in text or text.rstrip().endswith(" lds")
            self.lds_dma = lds or "_lds_" in op
            if "load" in op and not self.lds_dma:
                self.dst = R[0]; self.src = set().union(*R[1:])
            elif "atomic" in op and "sc0" in self.mods:
                self.dst = R[0]; self.src = set().union(*R)
            else:
                self.src = set().union(*R)
            if self.lds_dma: self.src.add("m0")
            self.wide_store = ("store" in op and ("x3" in op or "x4" in op))
            self.store_data = R[0] if op.startswith("buffer_store") else (R[1] if op.startswith("global_store") else set())
        elif self.is_ds:
            if op.startswith("ds_read") or op.startswith("ds_bpermute") or op.startswith("ds_swizzle") or op.startswith("ds_permute"):
                self.dst = R[0]; self.src = set().union(*R[1:])
            else:
                self.src = set().union(*R)
        elif self.is_salu:
            if op.startswith("s_cmp") or op.startswith("s_cbranch") or op in ("s_waitcnt", "s_nop", "s_barrier", "s_endpgm", "s_branch", "s_sleep", "s_setprio"):
                self.src = set().union(*R) if R else set()
            else:
                self.dst = R[0] if R else set(); self.src = set().union(*R[1:]) if len(R) > 1 else set()
                if "saveexec" in op: self.dst = self.dst | {"exec"}
    def states(self):
        if self.op == "s_nop": return int(self.ops[0], 0) + 1
        return 1

def needed(prod, cons):
    n = 0
    vd = {r for r in prod.dst if r[0] in "va" and r not in ("vcc",)}
    sd = {r for r in prod.dst if r[0] == "s" or r == "vcc"}
    if prod.is_valu:
        if cons.is_mfma and vd & cons.src: n = max(n, 2)
        if cons.is_valu:
            if cons.is_dpp and vd & cons.src: n = max(n, 2)
            if (cons.op.startswith("v_readlane") or cons.op.startswith("v_readfirstlane")) and vd & cons.src: n = max(n, 1)
            if cons.op.startswith("v_permlane") and vd & cons.src: n = max(n, 2)
            if prod.is_trans and not cons.is_trans and vd & cons.src: n = max(n, 1)
            if prod.is_trans and cons.is_trans and vd & cons.src: n = max(n, 1)
            if sd & cons.src:
                n = max(n, 4 if (cons.op.startswith("v_readlane") or cons.op.startswith("v_writelane")) else 2)
            if "exec" in prod.dst: n = max(n, 5)
            if ("op_sel" in prod.mods or "dst_sel" in prod.mods) and vd & (cons.src | cons.dst): n = max(n, 1)
        if cons.is_vmem and sd & cons.src: n = max(n, 5)
        if cons.is_salu and sd & cons.src: n = max(n, 1)
        if prod.is_trans and (cons.is_vmem or cons.is_ds) and vd & cons.src: n = max(n, 1)
    if prod.is_mfma:
        p = prod.passes
        d = prod.dst
        if cons.is_mfma:
            if d & (cons.srcA | cons.srcB): n = max(n, p + 4)
            if d & cons.srcC:
                if not (cons.srcC == d and cons.op == prod.op): n = max(n, p + 2)
            elif d & cons.dst:
                n = max(n, p + 2)
        elif cons.is_valu or cons.is_vmem or cons.is_ds:
            if d & (cons.src | cons.dst): n = max(n, p + 4)
        if cons.is_valu and (prod.srcC & cons.dst): n = max(n, p - 1)
    if prod.is_salu and "m0" in prod.dst and cons.is_vmem and getattr(cons, "lds_dma", False): n = max(n, 1)
    if prod.is_salu and "exec" in prod.dst and (cons.is_dpp or cons.is_mfma): n = max(n, 4)
    if prod.is_vmem and getattr(prod, "wide_store", False):
        if cons.is_valu and prod.store_data & cons.dst: n = max(n, 2)
        elif (cons.is_vmem or cons.is_ds) and prod.store_data & cons.dst: n = max(n, 1)
    return n

class Asm:
    def __init__(self):
        self.items = []
        self.lbl = 0
    def raw(self, s):
        for l in s.split("\n"): self.items.append(l)
    def __call__(self, s=""):
        for l in s.split("\n"):
            t = l.strip()
            if not t: continue
            if t.endswith(":") or t.startswith(".") or t.startswith(";"):
                self.items.append(t)
            else:
                self.items.append(Ins(t))
    def label(self, base="L"):
        self.lbl += 1
        return f"{base}_{self.lbl}"
    def text(self, fix=True):
        out = []; hist = []
        nn = 0
        for it in self.items:
            if isinstance(it, str):
                out.append(it)
                if it.endswith(":") and not it.startswith(";"):
                    pass
                continue
            if fix:
                need = 0; dist = 0
                for prev in reversed(hist):
                    if dist >= 20: break
                    n = needed(prev, it) - dist
                    need = max(need, n)
                    dist += prev.states()
                while need > 0:
                    k = min(need, 16)
                    nop = Ins(f"s_nop {k-1}")
                    out.append("    " + nop.text); hist.append(nop); need -= k; nn += 1
            out.append("    " + it.text); hist.append(it)
            if len(hist) > 64: hist = hist[-40:]
        self.nops_inserted = nn
        return "\n".join(out) + "\n"

def kernel_desc(name, vgpr, sgpr=102, accum=None, extra=""):
    if accum is None:
        accum = min(256, (vgpr + 3) // 4 * 4)
    return f""".section .rodata,"a"
.p2align 6
.amdhsa_kernel {name}
  .amdhsa_next_free_vgpr {vgpr}
  .amdhsa_next_free_sgpr {sgpr}
  .amdhsa_accum_offset {accum}
  .amdhsa_group_segment_fixed_size 0
  .amdhsa_kernarg_size 80
  .amdhsa_user_sgpr_count 2
  .amdhsa_user_sgpr_kernarg_segment_ptr 1
  .amdhsa_system_sgpr_workgroup_id_x 1
  .amdhsa_float_denorm_mode_32 3
  .amdhsa_float_denorm_mode_16_64 3
{extra}.end_amdhsa_kernel
.text
"""

def kernel_head(name):
    return f""".text
.globl {name}
.p2align 8
.type {name},@function
{name}:
"""

def fhex(x):
    import struct
    return "0x%08x" % struct.unpack("<I", struct.pack("<f", x))[0]

class Regs:
    def __init__(self, start=1, limit=256, prefix="v"):
        self.n = start; self.limit = limit; self.prefix = prefix; self.hi = start
    def alloc(self, cnt=1, align=1):
        self.n = (self.n + align - 1) // align * align
        b = self.n; self.n += cnt
        assert self.n <= self.limit, f"out of registers: {self.n}"
        self.hi = max(self.hi, self.n)
        return b
    def mark(self): return self.n
    def release(self, m): self.n = m
def vr(b, n=1):
    return f"v{b}" if n == 1 else f"v[{b}:{b+n-1}]"
def ar(b, n=1):
    return f"a{b}" if n == 1 else f"a[{b}:{b+n-1}]"
def sr(b, n=1):
    return f"s{b}" if n == 1 else f"s[{b}:{b+n-1}]"

class Tracked(Asm):
    def __init__(self):
        super().__init__()
        self.vmlog = []
        self.lglog = []
    def vm(self, tag, text, counted=True):
        self(text); self.vmlog.append((tag, counted))
    def lg(self, tag, text):
        self(text); self.lglog.append(tag)
    def _n_after(self, log, tags):
        idx = -1
        for i, e in enumerate(log):
            t = e[0] if isinstance(e, tuple) else e
            if t in tags: idx = i
        assert idx >= 0, f"tag {tags} never issued"
        n = 0
        for e in log[idx+1:]:
            if isinstance(e, tuple):
                if e[1]: n += 1
            else: n += 1
        return n
    def wait_vm(self, *tags):
        n = min(self._n_after(self.vmlog, tags), 63)
        self(f"s_waitcnt vmcnt({n})")
    def wait_lg(self, *tags):
        n = min(self._n_after(self.lglog, tags), 15)
        self(f"s_waitcnt lgkmcnt({n})")
    def drain_vm(self):
        self("s_waitcnt vmcnt(0)"); self.vmlog = []
    def drain_lg(self):
        self("s_waitcnt lgkmcnt(0)"); self.lglog = []
def interleave(a, primary, fillers, per=None, start=0):
    n = len(primary)
    fillers = list(fillers)
    for i, grp in enumerate(primary):
        for ins in grp:
            ins() if callable(ins) else a(ins)
        if i >= start and fillers:
            k = -(-len(fillers) // (n - i)) if per is None else per
            for _ in range(min(k, len(fillers))):
                f = fillers.pop(0)
                f() if callable(f) else a(f)
    for f in fillers:
        f() if callable(f) else a(f)
```

```python
import sys, math
from asmlib import *
import model as M
CS = M.CS
S_, D_, F_ = 2048, 512, 1792
OFF_W2P = M.OFF_ACT + S_ * F_ * 2
OFF_FLAG = (OFF_W2P + D_ * F_ * 2 + 4095) // 4096 * 4096
WS_USED = OFF_FLAG + 4096
OFF_STAMP = 32 << 20
LOG2E = 1.4426950408889634
MFMA16 = "v_mfma_f32_16x16x32_bf16"
MFMA32 = "v_mfma_f32_32x32x16_bf16"
CFG = dict(stamp=False, cyc=False, fake_xcc=False, spin=40000)

def srd(a, s, ptr, size):
    a(f"s_mov_b32 s{s}, s{ptr}")
    a(f"s_mov_b32 s{s+1}, s{ptr+1}")
    a(f"s_mov_b32 s{s+2}, {size}")
    a(f"s_mov_b32 s{s+3}, 0x00020000")
ST0 = 70
def stamp(a, i):
    if CFG["stamp"]:
        assert ST0 + 2*i + 1 <= 101
        a(f"{'s_memtime' if CFG['cyc'] else 's_memrealtime'} s[{ST0+2*i}:{ST0+2*i+1}]")
def stamp_flush(a, name, kidx, n):
    if not CFG["stamp"]: return
    a("s_waitcnt vmcnt(0)")
    stamp(a, n)
    a("s_waitcnt lgkmcnt(0)")
    a(f"s_cmp_eq_u32 s16, 0")
    a(f"s_cbranch_scc0 L_{name}_end")
    a("s_mov_b32 s40, s14\ns_mov_b32 s41, s15\ns_mov_b32 s42, 0x10000000\ns_mov_b32 s43, 0x00020000")
    a(f"s_lshl_b32 s17, s2, 7\ns_add_u32 s17, s17, {OFF_STAMP + kidx*256*128}")
    a("v_mov_b32 v1, s17")
    a(f"s_mov_b64 exec, 1")
    for i in range(n+1):
        a(f"v_mov_b32 v2, s{ST0+2*i}\nv_mov_b32 v3, s{ST0+2*i+1}")
        a(f"buffer_store_dwordx2 v[2:3], v1, s[40:43], 0 offen offset:{8*i}")
        a("s_nop 1")
    a("s_waitcnt vmcnt(0)")

def wave_reduce_add(a, regs):
    for mod in ("row_shr:1 row_mask:0xf bank_mask:0xf", "row_shr:2 row_mask:0xf bank_mask:0xf",
                "row_shr:4 row_mask:0xf bank_mask:0xf", "row_shr:8 row_mask:0xf bank_mask:0xf",
                "row_bcast:15 row_mask:0xa bank_mask:0xf", "row_bcast:31 row_mask:0xc bank_mask:0xf"):
        for r in regs:
            a(f"v_add_f32 v{r}, v{r}, v{r} {mod}" + (" bound_ctrl:0" if "shr" in mod else ""))

def cmul_tw(a, dre, dim_, sre, sim, tc, ts):
    n = len(dre)
    for r in range(n):
        a(f"v_mul_f32 v{dre[r]}, v{sre[r]}, v{tc[r]}")
        a(f"v_mul_f32 v{dim_[r]}, v{sim[r]}, v{tc[r]}")
    for r in range(n):
        a(f"v_fma_f32 v{dre[r]}, v{sim[r]}, v{ts[r]}, v{dre[r]}")
        a(f"v_fma_f32 v{dim_[r]}, -v{sre[r]}, v{ts[r]}, v{dim_[r]}")

def kA(a, name):
    a.raw(kernel_head(name))
    R = Regs(1, 256)
    a("s_cmp_ge_u32 s2, 256")
    a(f"s_cbranch_scc1 L_{name}_end")
    stamp(a, 0)
    a("s_load_dwordx4 s[4:7], s[0:1], 0")
    a("s_load_dwordx2 s[8:9], s[0:1], 16")
    a("s_load_dwordx2 s[10:11], s[0:1], 32")
    a("s_load_dwordx2 s[12:13], s[0:1], 48")
    a("s_load_dwordx2 s[14:15], s[0:1], 72")
    lane = R.alloc(); n15 = R.alloc(); g = R.alloc(); t0 = R.alloc(); t1 = R.alloc(); t2 = R.alloc()
    a(f"v_and_b32 v{lane}, 63, v0")
    a(f"v_lshrrev_b32 v{t0}, 6, v0")
    a(f"v_and_b32 v{n15}, 15, v0")
    a(f"v_readfirstlane_b32 s16, v{t0}")
    a(f"v_bfe_u32 v{g}, v0, 4, 2")
    a("s_lshr_b32 s17, s2, 5\ns_lshl_b32 s17, s17, 3\ns_and_b32 s18, s2, 7\ns_add_u32 s17, s17, s18")
    a("s_lshr_b32 s19, s17, 2")
    a("s_and_b32 s17, s17, 3\ns_lshl_b32 s17, s17, 2\ns_lshr_b32 s18, s2, 3\ns_and_b32 s18, s18, 3\ns_add_u32 s17, s17, s18")
    a("s_and_b32 s20, s16, 1\ns_lshr_b32 s21, s16, 1")
    a("s_lshl_b32 s17, s17, 1\ns_add_u32 s17, s17, s20")
    a("s_lshl_b32 s22, s19, 7\ns_add_u32 s22, s22, s17")
    a("s_lshl_b32 s22, s22, 10")
    a("s_lshl_b32 s23, s19, 5\ns_add_u32 s23, s23, s17\ns_lshl_b32 s23, s23, 4")
    a("s_lshl_b32 s24, s16, 12")
    voff16 = R.alloc()
    a(f"v_lshlrev_b32 v{voff16}, 4, v{lane}")
    a("s_waitcnt lgkmcnt(0)")
    stamp(a, 1)
    srd(a, 28, 4, S_ * D_ * 2)
    for j in range(4):
        a(f"s_add_u32 m0, s24, {j*1024}")
        a(f"s_add_u32 s25, s22, {j*32*1024}")
        a.vm("x", f"buffer_load_dwordx4 v{voff16}, s[28:31], s25 offen lds")
    srd(a, 32, 6, S_ * 257 * 2)
    srd(a, 36, 8, S_ * 257 * 2)
    srd(a, 40, 14, WS_USED)
    srd(a, 44, 10, D_ * F_ * 2)
    srd(a, 48, 12, D_ * F_ * 2)
    wdma = R.alloc(); abw = [R.alloc(), R.alloc()]
    a("s_lshl_b32 s26, s2, 2\ns_add_u32 s26, s26, s16")
    a("s_lshr_b32 s27, s26, 3\ns_and_b32 s52, s26, 7")
    a(f"v_lshrrev_b32 v{t0}, 3, v{lane}")
    a(f"v_bfe_u32 v{t1}, v{lane}, 4, 1")
    a(f"v_lshlrev_b32 v{t1}, 2, v{t1}")
    a(f"v_and_b32 v{t2}, 7, v{lane}")
    a(f"v_xor_b32 v{t1}, v{t1}, v{t2}")
    a(f"v_lshlrev_b32 v{t1}, 4, v{t1}")
    a(f"v_lshl_add_u32 v{wdma}, v{t0}, 10, v{t1}")
    a("s_lshl_b32 s53, s27, 14\ns_lshl_b32 s54, s52, 7\ns_add_u32 s53, s53, s54")
    a("s_lshl_b32 s54, s16, 11\ns_add_u32 s54, s54, 16384")
    a("s_mov_b32 m0, s54")
    a.vm("w2", f"buffer_load_dwordx4 v{wdma}, s[48:51], s53 offen lds")
    a("s_add_u32 m0, s54, 1024\ns_add_u32 s55, s53, 8192")
    a.vm("w2", f"buffer_load_dwordx4 v{wdma}, s[48:51], s55 offen lds")
    wv = [R.alloc() for _ in range(16)]
    wo0 = R.alloc(); wo1 = R.alloc(); wdst = R.alloc()
    a("s_lshr_b32 s56, s2, 3\ns_and_b32 s56, s56, 3")
    a("s_and_b32 s57, s2, 7")
    a("s_lshr_b32 s58, s2, 5")
    a(f"v_and_b32 v{t0}, 31, v0")
    a(f"v_lshrrev_b32 v{t1}, 5, v0")
    a("s_lshl_b32 s59, s58, 5")
    a(f"v_add_u32 v{t0}, s59, v{t0}")
    a(f"v_cmp_eq_u32 vcc, 0, v{t0}")
    a(f"v_mov_b32 v{t2}, 256")
    a(f"v_cndmask_b32 v{t2}, v{t0}, v{t2}, vcc")
    a("s_lshl_b32 s60, s56, 4\ns_lshl_b32 s61, s57, 8\ns_add_u32 s60, s60, s61")
    a(f"v_add_u32 v{wo0}, s60, v{t1}")
    a(f"s_movk_i32 s62, 514")
    a(f"v_mul_lo_u32 v{wo0}, v{wo0}, s62")
    a(f"v_lshl_add_u32 v{wo0}, v{t2}, 1, v{wo0}")
    a(f"v_add_u32 v{wo1}, {8*514}, v{wo0}")
    a(f"s_mov_b32 s62, {CS}")
    a(f"v_mul_lo_u32 v{wdst}, v{t0}, s62")
    a(f"v_lshl_add_u32 v{wdst}, v{t1}, 4, v{wdst}")
    a("s_lshl_b32 s63, s56, 1\ns_lshr_b32 s64, s57, 2\ns_add_u32 s63, s63, s64\ns_lshl_b32 s63, s63, 6")
    a("s_and_b32 s64, s57, 3\ns_lshl_b32 s64, s64, 4\ns_add_u32 s63, s63, s64\ns_lshl_b32 s63, s63, 4")
    a(f"s_add_u32 s63, s63, {M.OFF_WT}")
    for r in range(4):
        a(f"s_mov_b32 s{64+r}, {r*64*514}")
    for it in range(2):
        for r in range(4):
            o = wo0 if it == 0 else wo1
            a.vm("w", f"buffer_load_ushort v{wv[it*8+r*2]}, v{o}, s[32:35], s{64+r} offen")
            a.vm("w", f"buffer_load_ushort v{wv[it*8+r*2+1]}, v{o}, s[36:39], s{64+r} offen")
    pf = R.alloc(8, 4)
    a("s_mul_i32 s68, s2, 7168\ns_lshl_b32 s69, s16, 11\ns_add_u32 s68, s68, s69")
    a.vm("pf", f"buffer_load_dwordx4 {vr(pf,4)}, v{voff16}, s[44:47], s68 offen")
    a.vm("pf", f"buffer_load_dwordx4 {vr(pf+4,4)}, v{voff16}, s[44:47], s68 offen offset:1024")
    sent = R.alloc(4, 4)
    for i in range(4): a(f"v_mov_b32 v{sent+i}, -1")
    a(f"s_mul_i32 s68, s2, {CS}\ns_lshl_b32 s69, s16, 11\ns_add_u32 s68, s68, s69\ns_add_u32 s68, s68, {M.OFF_Y}")
    a.vm("pre", f"buffer_store_dwordx4 {vr(sent,4)}, v{voff16}, s[40:43], s68 offen")
    a.vm("pre", f"buffer_store_dwordx4 {vr(sent,4)}, v{voff16}, s[40:43], s68 offen offset:1024")
    zer = R.alloc(4, 4)
    a("s_cmp_eq_u32 s2, 0")
    a(f"s_cbranch_scc0 L_{name}_nz")
    for i in range(4): a(f"v_mov_b32 v{zer+i}, 0")
    a(f"s_lshl_b32 s69, s16, 10\ns_add_u32 s69, s69, {OFF_FLAG}")
    a.vm("z", f"buffer_store_dwordx4 {vr(zer,4)}, v{voff16}, s[40:43], s69 offen", counted=False)
    a(f"L_{name}_nz:")
    c1f = R.alloc(); gf4 = R.alloc()
    a(f"s_lshl_b32 s25, s21, 4")
    a(f"v_add_u32 v{t0}, s25, v{n15}")
    a(f"v_cvt_f32_u32 v{c1f}, v{t0}")
    a(f"v_lshlrev_b32 v{t1}, 2, v{g}")
    a(f"v_cvt_f32_u32 v{gf4}, v{t1}")
    sgn = R.alloc()
    a(f"v_and_b32 v{t1}, 1, v{t0}")
    a(f"v_mov_b32 v{sgn}, 0x80008000")
    a(f"v_mul_lo_u32 v{sgn}, v{sgn}, v{t1}")
    BAr = R.alloc(4, 4); BAi = R.alloc(4, 4); BB = R.alloc(4, 4)
    tc = [R.alloc() for _ in range(4)]; ts = [R.alloc() for _ in range(4)]
    m0_ = R.mark()
    cc = [R.alloc() for _ in range(4)]; ss = [R.alloc() for _ in range(4)]; dd = [R.alloc() for _ in range(4)]
    for e in range(4):
        a(f"v_add_f32 v{dd[e]}, {float(e)}, v{gf4}") if e else a(f"v_mov_b32 v{dd[e]}, v{gf4}")
    rv = [R.alloc() for _ in range(4)]
    for e in range(4): a(f"v_mul_f32 v{rv[e]}, v{c1f}, v{dd[e]}")
    for e in range(4): a(f"v_mul_f32 v{cc[e]}, {fhex(1/512)}, v{rv[e]}")
    for e in range(4):
        a(f"v_cos_f32 v{tc[e]}, v{cc[e]}")
        a(f"v_sin_f32 v{ts[e]}, v{cc[e]}")
    for e in range(4): a(f"v_mul_f32 v{rv[e]}, {fhex(1/32)}, v{rv[e]}")
    for e in range(4):
        a(f"v_cos_f32 v{cc[e]}, v{rv[e]}")
        a(f"v_sin_f32 v{ss[e]}, v{rv[e]}")
    a(f"v_cvt_pk_bf16_f32 v{BAr}, v{cc[0]}, v{cc[1]}")
    a(f"v_cvt_pk_bf16_f32 v{BAr+1}, v{cc[2]}, v{cc[3]}")
    a(f"v_cvt_pk_bf16_f32 v{BAi}, -v{ss[0]}, -v{ss[1]}")
    a(f"v_cvt_pk_bf16_f32 v{BAi+1}, -v{ss[2]}, -v{ss[3]}")
    a(f"v_xor_b32 v{BAr+2}, v{sgn}, v{BAr}")
    a(f"v_xor_b32 v{BAr+3}, v{sgn}, v{BAr+1}")
    a(f"v_xor_b32 v{BAi+2}, v{sgn}, v{BAi}")
    a(f"v_xor_b32 v{BAi+3}, v{sgn}, v{BAi+1}")
    a(f"v_lshrrev_b32 v{t0}, 1, v{n15}")
    a(f"v_cvt_f32_u32 v{t0}, v{t0}")
    a(f"v_and_b32 v{t1}, 1, v{n15}")
    a(f"v_cvt_f32_u32 v{t1}, v{t1}")
    a(f"v_mul_f32 v{t0}, {fhex(1/16)}, v{t0}")
    a(f"v_mul_f32 v{t1}, {fhex(0.25)}, v{t1}")
    for e in range(4): a(f"v_fma_f32 v{rv[e]}, v{t0}, v{dd[e]}, v{t1}")
    for e in range(4):
        a(f"v_cos_f32 v{cc[e]}, v{rv[e]}")
        a(f"v_sin_f32 v{ss[e]}, v{rv[e]}")
    a(f"v_cvt_pk_bf16_f32 v{BB}, v{cc[0]}, v{cc[1]}")
    a(f"v_cvt_pk_bf16_f32 v{BB+1}, v{cc[2]}, v{cc[3]}")
    a(f"v_cvt_pk_bf16_f32 v{BB+2}, v{ss[0]}, v{ss[1]}")
    a(f"v_cvt_pk_bf16_f32 v{BB+3}, v{ss[2]}, v{ss[3]}")
    R.release(m0_)
    sto = R.alloc()
    a(f"s_lshl_b32 s25, s21, 4")
    a(f"v_lshl_add_u32 v{t0}, v{g}, 6, v{n15}")
    a(f"v_add_u32 v{t0}, s25, v{t0}")
    a(f"s_mov_b32 s62, {CS}")
    a(f"v_mul_lo_u32 v{sto}, v{t0}, s62")
    lds8 = R.alloc()
    a(f"v_lshlrev_b32 v{lds8}, 3, v{lane}")
    a(f"v_add_u32 v{lds8}, s24, v{lds8}")
    ones = R.alloc(); sg1 = R.alloc()
    a(f"v_mov_b32 v{ones}, 0x3f803f80")
    a(f"v_and_b32 v{t0}, 1, v{lane}")
    a(f"v_cvt_f32_u32 v{t0}, v{t0}")
    a(f"v_fma_f32 v{sg1}, v{t0}, -2.0, 1.0")
    a(f"v_lshrrev_b32 v{t0}, 5, v{lane}")
    a(f"v_bfe_u32 v{t1}, v{lane}, 2, 2")
    a(f"v_lshl_add_u32 v{t0}, v{t0}, 2, v{t1}")
    a(f"v_lshlrev_b32 v{abw[0]}, 7, v{t0}")
    a(f"v_lshrrev_b32 v{t1}, 1, v{t1}")
    a(f"v_lshl_add_u32 v{abw[0]}, v{t1}, 6, v{abw[0]}")
    a(f"v_bfe_u32 v{t1}, v{lane}, 4, 1")
    a(f"v_lshl_add_u32 v{abw[0]}, v{t1}, 5, v{abw[0]}")
    a(f"v_and_b32 v{t1}, 3, v{lane}")
    a(f"v_lshl_add_u32 v{abw[0]}, v{t1}, 3, v{abw[0]}")
    a(f"v_add_u32 v{abw[0]}, s54, v{abw[0]}")
    a(f"v_xor_b32 v{abw[1]}, 64, v{abw[0]}")
    A = [R.alloc(4, 4) for _ in range(4)]
    stamp(a, 2)
    a.wait_vm("x")
    stamp(a, 3)
    for j in range(4):
        a(f"ds_read_b64_tr_b16 {vr(A[j],2)}, v{lds8} offset:{j*1024}")
        a(f"ds_read_b64_tr_b16 {vr(A[j]+2,2)}, v{lds8} offset:{j*1024+512}")
    U = [R.alloc(8, 4) for _ in range(4)]
    sq = [R.alloc() for _ in range(4)]; sm = [R.alloc() for _ in range(4)]; ny = [R.alloc() for _ in range(4)]
    for j in range(4):
        a(f"s_waitcnt lgkmcnt({2*(3-j)})")
        a(f"{MFMA16} {vr(U[j],4)}, {vr(A[j],4)}, {vr(BAr,4)}, 0")
        a(f"{MFMA16} {vr(U[j]+4,4)}, {vr(A[j],4)}, {vr(BAi,4)}, 0")
    for j in range(4):
        a(f"v_dot2_f32_bf16 v{sq[j]}, v{A[j]}, v{A[j]}, 0")
        a(f"v_dot2_f32_bf16 v{sm[j]}, v{A[j]}, v{ones}, 0")
    for k in range(1, 4):
        for j in range(4):
            a(f"v_dot2_f32_bf16 v{sq[j]}, v{A[j]+k}, v{A[j]+k}, v{sq[j]}")
            a(f"v_dot2_f32_bf16 v{sm[j]}, v{A[j]+k}, v{ones}, v{sm[j]}")
    for j in range(4): a(f"v_mul_f32 v{ny[j]}, v{sg1}, v{sm[j]}")
    wave_reduce_add(a, sq + sm + ny)
    P = [R.alloc(4, 4) for _ in range(4)]
    tw = [R.alloc() for _ in range(8)]
    for j in range(4):
        cmul_tw(a, tw[:4], tw[4:], [U[j]+r for r in range(4)], [U[j]+4+r for r in range(4)], tc, ts)
        a(f"v_cvt_pk_bf16_f32 v{P[j]}, v{tw[0]}, v{tw[1]}")
        a(f"v_cvt_pk_bf16_f32 v{P[j]+1}, v{tw[2]}, v{tw[3]}")
        a(f"v_cvt_pk_bf16_f32 v{P[j]+2}, v{tw[4]}, v{tw[5]}")
        a(f"v_cvt_pk_bf16_f32 v{P[j]+3}, v{tw[6]}, v{tw[7]}")
        a(f"{MFMA16} {vr(U[j],4)}, {vr(BB,4)}, {vr(P[j],4)}, 0")
    for j in range(4): a(f"v_mul_f32 v{sm[j]}, {fhex(1/512)}, v{sm[j]}")
    for j in range(4): a(f"v_mul_f32 v{sm[j]}, v{sm[j]}, v{sm[j]}")
    a(f"s_mov_b32 s26, {fhex(1/512)}")
    for j in range(4): a(f"v_fma_f32 v{sq[j]}, v{sq[j]}, s26, -v{sm[j]}")
    for j in range(4): a(f"v_max_f32 v{sq[j]}, 0, v{sq[j]}")
    for j in range(4): a(f"v_add_f32 v{sq[j]}, {fhex(1e-5)}, v{sq[j]}")
    for j in range(4): a(f"v_rsq_f32 v{sq[j]}, v{sq[j]}")
    for j in range(4): a(f"v_mul_f32 v{sq[j]}, {fhex(2.0**-19)}, v{sq[j]}")
    for j in range(4): a(f"v_mul_f32 v{ny[j]}, v{sq[j]}, v{ny[j]}")
    for j in range(4): a(f"v_mul_f32 v{ny[j]}, 0.5, v{ny[j]}")
    for j in range(4):
        a(f"v_readlane_b32 s{28+j}, v{sq[j]}, 63")
        a(f"v_readlane_b32 s{32+j}, v{ny[j]}, 63")
    Q0 = R.alloc(4, 4); Q1 = R.alloc(4, 4)
    for j in range(4):
        for r in range(4): a(f"v_mul_f32 v{U[j]+r}, s{28+j}, v{U[j]+r}")
    for j in range(4):
        a(f"v_cvt_pk_bf16_f32 v{Q0+j}, v{U[j]}, v{U[j]+1}")
        a(f"v_cvt_pk_bf16_f32 v{Q1+j}, v{U[j]+2}, v{U[j]+3}")
    a("s_cmp_eq_u32 s21, 0")
    a(f"s_cbranch_scc0 L_{name}_nonyq")
    for j in range(4):
        a(f"v_mov_b32 v{t0}, s{32+j}")
        a(f"v_cvt_pk_bf16_f32 v{t0}, v{t0}, 0")
        a(f"v_readfirstlane_b32 s{36+j}, v{t0}")
        a(f"v_writelane_b32 v{Q0+j}, s{36+j}, 0")
    a(f"L_{name}_nonyq:")
    a("s_nop 4")
    a(f"s_add_u32 s27, s23, {M.OFF_X1}")
    a(f"s_add_u32 s25, s27, {32*CS}")
    a.vm("st", f"buffer_store_dwordx4 {vr(Q0,4)}, v{sto}, s[40:43], s27 offen")
    a.vm("st", f"buffer_store_dwordx4 {vr(Q1,4)}, v{sto}, s[40:43], s25 offen")
    stamp(a, 4)
    a.wait_vm("w2")
    Wf = [R.alloc(4, 4) for _ in range(2)]
    for dt in range(2):
        a(f"ds_read_b64_tr_b16 {vr(Wf[dt],2)}, v{abw[dt]}")
        a(f"ds_read_b64_tr_b16 {vr(Wf[dt]+2,2)}, v{abw[dt]} offset:1024")
    a("s_lshl_b32 s26, s2, 2\ns_add_u32 s26, s26, s16\ns_lshr_b32 s27, s26, 3")
    a(f"s_mul_i32 s53, s52, {2*112*1024}\ns_lshl_b32 s27, s27, 10\ns_add_u32 s53, s53, s27\ns_add_u32 s53, s53, {OFF_W2P}")
    a(f"s_add_u32 s55, s53, {112*1024}")
    a("s_cmp_lt_u32 s26, 896")
    a("s_waitcnt lgkmcnt(0)")
    a(f"s_cbranch_scc0 L_{name}_now2")
    a.vm("st", f"buffer_store_dwordx4 {vr(Wf[0],4)}, v{voff16}, s[40:43], s53 offen", counted=False)
    a.vm("st", f"buffer_store_dwordx4 {vr(Wf[1],4)}, v{voff16}, s[40:43], s55 offen", counted=False)
    a(f"L_{name}_now2:")
    a.wait_vm("w")
    WQ = [R.alloc(4, 4) for _ in range(2)]
    for it in range(2):
        for r in range(4):
            a(f"v_lshl_or_b32 v{WQ[it]+r}, v{wv[it*8+r*2+1]}, 16, v{wv[it*8+r*2]}")
    a(f"buffer_store_dwordx4 {vr(WQ[0],4)}, v{wdst}, s[40:43], s63 offen")
    a(f"buffer_store_dwordx4 {vr(WQ[1],4)}, v{wdst}, s[40:43], s63 offen offset:128")
    stamp_flush(a, name, 0, 5)
    a(f"L_{name}_end:")
    a("s_endpgm")
    a.raw(kernel_desc(name, R.hi, 102))
    return R.hi

LB = 131072
def mish_ops(acc, tmp, out_pk):
    ops = []
    for h in range(2):
        z = [acc + 8*h + i for i in range(8)]
        for i in range(8): ops.append(f"v_mul_f32 v{tmp[i]}, {fhex(LOG2E)}, v{z[i]}")
        for i in range(8): ops.append(f"v_exp_f32 v{tmp[i]}, v{tmp[i]}")
        for i in range(8): ops.append(f"v_add_f32 v{tmp[i]}, 1.0, v{tmp[i]}")
        for i in range(8): ops.append(f"v_fma_f32 v{tmp[i]}, v{tmp[i]}, v{tmp[i]}, 1.0")
        for i in range(8): ops.append(f"v_rcp_f32 v{tmp[i]}, v{tmp[i]}")
        for i in range(8): ops.append(f"v_mul_f32 v{tmp[i]}, v{z[i]}, v{tmp[i]}")
        for i in range(8): ops.append(f"v_fma_f32 v{tmp[i]}, v{tmp[i]}, -2.0, v{z[i]}")
        for k in range(4): ops.append(f"v_cvt_pk_bf16_f32 v{out_pk+4*h+k}, v{tmp[2*k]}, v{tmp[2*k+1]}")
    return ops

def poll_flags(a, name, tagname, voff, nl):
    a("s_cmp_eq_u32 s16, 0")
    a(f"s_cbranch_scc0 L_{name}_{tagname}_done")
    a("s_mov_b32 s17, 0")
    a(f"L_{name}_{tagname}_poll:")
    a(f"buffer_load_dword v1, v{voff}, s[40:43], 0 offen sc1")
    a("s_waitcnt vmcnt(0)")
    a("v_cmp_ne_u32 vcc, 1, v1")
    a("s_nop 4")
    a(f"s_cbranch_vccz L_{name}_{tagname}_ok")
    a("s_sleep 1")
    a(f"s_add_u32 s17, s17, 1\ns_cmp_lt_u32 s17, {CFG['spin']}")
    a(f"s_cbranch_scc1 L_{name}_{tagname}_poll")
    a(f"L_{name}_{tagname}_ok:")
    a("s_cmp_eq_u32 s58, 1")
    a(f"s_cbranch_scc1 L_{name}_{tagname}_done")
    a("buffer_inv sc1")
    a("s_waitcnt vmcnt(0)")
    a(f"L_{name}_{tagname}_done:")
    a("s_barrier")

def publish(a, name, tagname, off):
    a.drain_vm()
    a("s_barrier")
    a("s_cmp_eq_u32 s16, 0")
    a(f"s_cbranch_scc0 L_{name}_{tagname}_pd")
    a(f"s_lshl_b32 s17, s56, 7\ns_lshl_b32 s18, s57, 2\ns_add_u32 s17, s17, s18\ns_add_u32 s17, s17, {off}")
    a("v_mov_b32 v1, s17\nv_mov_b32 v2, 1")
    a("s_mov_b64 exec, 1")
    a("s_cmp_eq_u32 s58, 1")
    a(f"s_cbranch_scc1 L_{name}_{tagname}_pure")
    a("buffer_wbl2 sc1")
    a("s_waitcnt vmcnt(0)")
    a("buffer_store_dword v2, v1, s[40:43], 0 offen sc1")
    a(f"s_branch L_{name}_{tagname}_pe")
    a(f"L_{name}_{tagname}_pure:")
    a("buffer_store_dword v2, v1, s[40:43], 0 offen")
    a(f"L_{name}_{tagname}_pe:")
    a("s_mov_b64 exec, -1")
    a(f"L_{name}_{tagname}_pd:")

def kB(a, name):
    a.raw(kernel_head(name))
    a("s_cmp_ge_u32 s2, 256")
    a(f"s_cbranch_scc1 L_{name}_end")
    stamp(a, 0)
    a("s_load_dwordx2 s[4:5], s[0:1], 0")
    a("s_load_dwordx4 s[8:11], s[0:1], 32")
    a("s_load_dwordx2 s[12:13], s[0:1], 56")
    a("s_load_dwordx2 s[14:15], s[0:1], 72")
    if CFG["fake_xcc"]:
        a("s_mul_i32 s56, s2, 7\ns_lshr_b32 s56, s56, 8")
        a("s_and_b32 s17, s2, 1\ns_add_u32 s56, s56, s17")
    else:
        a("s_getreg_b32 s56, hwreg(HW_REG_XCC_ID, 0, 3)")
    R = Regs(3, 256)
    lane = R.alloc(); n15 = R.alloc(); g = R.alloc(); voff16 = R.alloc(); t0 = R.alloc(); t1 = R.alloc(); t2 = R.alloc()
    a(f"v_and_b32 v{lane}, 63, v0")
    a(f"v_lshrrev_b32 v{t0}, 6, v0")
    a(f"v_and_b32 v{n15}, 15, v0")
    a(f"v_readfirstlane_b32 s16, v{t0}")
    a(f"v_bfe_u32 v{g}, v0, 4, 2")
    a(f"v_lshlrev_b32 v{voff16}, 4, v{lane}")
    base_mark = R.mark()
    a(f"s_mul_i32 s17, s2, {CS}")
    a("s_lshl_b32 s18, s16, 11")
    a("s_add_u32 s19, s17, s18")
    a("s_waitcnt lgkmcnt(0)")
    srd(a, 40, 14, WS_USED)
    a(f"s_add_u32 s20, s19, {M.OFF_X1}")
    a(f"s_add_u32 m0, s18, {LB}")
    a.vm("x1", f"buffer_load_dwordx4 v{voff16}, s[40:43], s20 offen lds")
    a.vm("x1", f"buffer_load_dwordx4 v{voff16}, s[40:43], s20 offen offset:1024 lds")
    Wv = [R.alloc(4, 4) for _ in range(2)]
    a(f"s_add_u32 s21, s19, {M.OFF_WT}")
    a.vm("wt", f"buffer_load_dwordx4 {vr(Wv[0],4)}, v{voff16}, s[40:43], s21 offen")
    a.vm("wt", f"buffer_load_dwordx4 {vr(Wv[1],4)}, v{voff16}, s[40:43], s21 offen offset:1024")
    tick = R.alloc()
    a("s_cmp_eq_u32 s16, 0")
    a(f"s_cbranch_scc0 L_{name}_notick")
    a(f"s_lshl_b32 s22, s56, 7\ns_add_u32 s22, s22, {OFF_FLAG}")
    a(f"v_mov_b32 v1, s22\nv_mov_b32 v{tick}, 1")
    a("s_mov_b64 exec, 1")
    a.vm("tick", f"buffer_atomic_add v{tick}, v1, s[40:43], 0 offen sc0", counted=False)
    a("s_mov_b64 exec, -1")
    a(f"L_{name}_notick:")
    srd(a, 28, 4, S_ * D_ * 2)
    srd(a, 44, 8, D_ * F_ * 2)
    srd(a, 48, 10, F_ * 2)
    srd(a, 52, 12, S_ * D_ * 2)
    stamp(a, 1)
    kbf = R.alloc(); gf4 = R.alloc(); nf = R.alloc(); spar = R.alloc()
    a("s_lshl_b32 s22, s16, 4")
    a(f"v_add_u32 v{t0}, s22, v{n15}")
    a(f"v_cvt_f32_u32 v{kbf}, v{t0}")
    a(f"v_cvt_f32_u32 v{nf}, v{n15}")
    a(f"v_lshlrev_b32 v{t1}, 2, v{g}")
    a(f"v_cvt_f32_u32 v{gf4}, v{t1}")
    a(f"v_and_b32 v{t1}, 1, v{n15}")
    a(f"v_mov_b32 v{spar}, 0x80008000")
    a(f"v_mul_lo_u32 v{spar}, v{spar}, v{t1}")
    F64r = [R.alloc(4, 4) for _ in range(4)]; F64i = [R.alloc(4, 4) for _ in range(4)]
    Co = [R.alloc(4, 4) for _ in range(2)]; Si = [R.alloc(4, 4) for _ in range(2)]; Ns = [R.alloc(4, 4) for _ in range(2)]
    t1c = [R.alloc() for _ in range(8)]; t1s = [R.alloc() for _ in range(8)]
    t2c = [R.alloc() for _ in range(8)]; t2s = [R.alloc() for _ in range(8)]
    mk = R.mark()
    dd = [R.alloc() for _ in range(4)]; rv = [R.alloc() for _ in range(8)]
    cc = [R.alloc() for _ in range(8)]; ss = [R.alloc() for _ in range(8)]
    for e in range(4):
        a(f"v_add_f32 v{dd[e]}, {float(e)}, v{gf4}") if e else a(f"v_mov_b32 v{dd[e]}, v{gf4}")
    a(f"v_mul_f32 v{t0}, {fhex(1/64)}, v{kbf}")
    a(f"v_mul_f32 v{t1}, {fhex(16/64)}, v{kbf}")
    for i in range(4):
        a(f"v_mul_f32 v{rv[i]}, v{t0}, v{dd[i]}")
        a(f"v_fma_f32 v{rv[4+i]}, v{t0}, v{dd[i]}, v{t1}")
    for i in range(8):
        a(f"v_cos_f32 v{cc[i]}, v{rv[i]}")
        a(f"v_sin_f32 v{ss[i]}, v{rv[i]}")
    for t in range(2):
        for i in range(4):
            a(f"v_cvt_pk_bf16_f32 v{F64r[t]+i}, v{cc[4*t+i]}, v{ss[4*t+i]}")
            a(f"v_cvt_pk_bf16_f32 v{F64i[t]+i}, -v{ss[4*t+i]}, v{cc[4*t+i]}")
    for t in range(2):
        for i in range(4):
            a(f"v_xor_b32 v{F64r[t+2]+i}, v{spar}, v{F64r[t]+i}")
            a(f"v_xor_b32 v{F64i[t+2]+i}, v{spar}, v{F64i[t]+i}")
    a(f"v_mul_f32 v{t0}, {fhex(1/32)}, v{nf}")
    for e in range(4): a(f"v_mul_f32 v{rv[e]}, v{t0}, v{dd[e]}")
    for e in range(4):
        a(f"v_cos_f32 v{cc[e]}, v{rv[e]}")
        a(f"v_sin_f32 v{ss[e]}, v{rv[e]}")
    a(f"v_cvt_pk_bf16_f32 v{Co[0]}, v{cc[0]}, v{cc[1]}")
    a(f"v_cvt_pk_bf16_f32 v{Co[0]+1}, v{cc[2]}, v{cc[3]}")
    a(f"v_cvt_pk_bf16_f32 v{Si[0]}, v{ss[0]}, v{ss[1]}")
    a(f"v_cvt_pk_bf16_f32 v{Si[0]+1}, v{ss[2]}, v{ss[3]}")
    for k in range(2):
        a(f"v_xor_b32 v{Co[0]+2+k}, v{spar}, v{Co[0]+k}")
        a(f"v_xor_b32 v{Si[0]+2+k}, v{spar}, v{Si[0]+k}")
    for k in range(4):
        a(f"v_xor_b32 v{Co[1]+k}, 0x80000000, v{Co[0]+k}")
        a(f"v_xor_b32 v{Si[1]+k}, 0x80000000, v{Si[0]+k}")
    for m in range(2):
        for k in range(4): a(f"v_xor_b32 v{Ns[m]+k}, 0x80008000, v{Si[m]+k}")
    a(f"v_mul_f32 v{t0}, {fhex(1/2048)}, v{kbf}")
    a(f"v_mul_f32 v{t1}, {fhex(16/2048)}, v{kbf}")
    for r in range(4):
        a(f"v_mul_f32 v{rv[r]}, v{t0}, v{dd[r]}")
        a(f"v_fma_f32 v{rv[4+r]}, v{t0}, v{dd[r]}, v{t1}")
    for i in range(8):
        a(f"v_cos_f32 v{t1c[i]}, v{rv[i]}")
        a(f"v_sin_f32 v{t1s[i]}, v{rv[i]}")
    a(f"v_cvt_f32_u32 v{t2}, s22")
    for r in range(4): a(f"v_add_f32 v{cc[r]}, v{t2}, v{dd[r]}")
    a(f"v_mul_f32 v{t0}, {fhex(1/2048)}, v{nf}")
    a(f"v_add_f32 v{t1}, {fhex(16/2048)}, v{t0}")
    for r in range(4):
        a(f"v_mul_f32 v{rv[r]}, v{t0}, v{cc[r]}")
        a(f"v_mul_f32 v{rv[4+r]}, v{t1}, v{cc[r]}")
    for i in range(8):
        a(f"v_cos_f32 v{t2c[i]}, v{rv[i]}")
        a(f"v_sin_f32 v{t2s[i]}, v{rv[i]}")
    R.release(mk)
    rd = R.alloc()
    a(f"v_lshlrev_b32 v{rd}, 9, v{g}")
    a(f"v_lshl_add_u32 v{rd}, v{n15}, 4, v{rd}")
    a(f"v_add_u32 v{rd}, {LB}, v{rd}")
    A = [[R.alloc(4, 4) for _ in range(4)] for _ in range(2)]
    stamp(a, 2)
    a.wait_vm("x1")
    a("s_barrier")
    for t in range(4):
        for at in range(2):
            a(f"ds_read_b128 {vr(A[at][t],4)}, v{rd} offset:{t*2048+at*256}")
    Dr = [R.alloc(4, 4) for _ in range(2)]; Di = [R.alloc(4, 4) for _ in range(2)]
    for t in range(4):
        a(f"s_waitcnt lgkmcnt({6-2*t})")
        for at in range(2):
            a(f"{MFMA16} {vr(Dr[at],4)}, {vr(A[at][t],4)}, {vr(F64r[t],4)}, " + ("0" if t == 0 else vr(Dr[at],4)))
            a(f"{MFMA16} {vr(Di[at],4)}, {vr(A[at][t],4)}, {vr(F64i[t],4)}, " + ("0" if t == 0 else vr(Di[at],4)))
    Tr = [R.alloc() for _ in range(8)]; Ti = [R.alloc() for _ in range(8)]
    dre = [Dr[0]+r for r in range(4)] + [Dr[1]+r for r in range(4)]
    dim_ = [Di[0]+r for r in range(4)] + [Di[1]+r for r in range(4)]
    cmul_tw(a, Tr, Ti, dre, dim_, t1c, t1s)
    Pr = R.alloc(4, 4); Pi = R.alloc(4, 4)
    def pack8(dst, src):
        for k in range(4): a(f"v_cvt_pk_bf16_f32 v{dst+k}, v{src[2*k]}, v{src[2*k+1]}")
    pack8(Pr, Tr); pack8(Pi, Ti)
    for m in range(2):
        a(f"{MFMA16} {vr(Dr[m],4)}, {vr(Co[m],4)}, {vr(Pr,4)}, 0")
        a(f"{MFMA16} {vr(Di[m],4)}, {vr(Co[m],4)}, {vr(Pi,4)}, 0")
    for m in range(2):
        a(f"{MFMA16} {vr(Dr[m],4)}, {vr(Si[m],4)}, {vr(Pi,4)}, {vr(Dr[m],4)}")
        a(f"{MFMA16} {vr(Di[m],4)}, {vr(Ns[m],4)}, {vr(Pr,4)}, {vr(Di[m],4)}")
    wr = [R.alloc() for _ in range(8)]; wi = [R.alloc() for _ in range(8)]
    a.drain_vm()
    for m in range(2):
        for r in range(4):
            a(f"v_lshlrev_b32 v{wr[4*m+r]}, 16, v{Wv[m]+r}")
            a(f"v_and_b32 v{wi[4*m+r]}, 0xffff0000, v{Wv[m]+r}")
    for i in range(8):
        a(f"v_mul_f32 v{Tr[i]}, v{dre[i]}, v{wr[i]}")
        a(f"v_mul_f32 v{Ti[i]}, -v{dre[i]}, v{wi[i]}")
    for i in range(8):
        a(f"v_fma_f32 v{Tr[i]}, -v{dim_[i]}, v{wi[i]}, v{Tr[i]}")
        a(f"v_fma_f32 v{Ti[i]}, -v{dim_[i]}, v{wr[i]}, v{Ti[i]}")
    pack8(Pr, Tr); pack8(Pi, Ti)
    for m in range(2):
        a(f"{MFMA16} {vr(Dr[m],4)}, {vr(Pr,4)}, {vr(Co[m],4)}, 0")
        a(f"{MFMA16} {vr(Di[m],4)}, {vr(Pi,4)}, {vr(Co[m],4)}, 0")
    for m in range(2):
        a(f"{MFMA16} {vr(Dr[m],4)}, {vr(Pi,4)}, {vr(Si[m],4)}, {vr(Dr[m],4)}")
        a(f"{MFMA16} {vr(Di[m],4)}, {vr(Pr,4)}, {vr(Ns[m],4)}, {vr(Di[m],4)}")
    cmul_tw(a, Tr, Ti, dre, dim_, t2c, t2s)
    E = [R.alloc(4, 4) for _ in range(2)]
    for m in range(2):
        for r in range(4): a(f"v_cvt_pk_bf16_f32 v{E[m]+r}, v{Tr[4*m+r]}, v{Ti[4*m+r]}")
    wa = R.alloc()
    a(f"s_lshl_b32 s23, s16, 10\ns_add_u32 s23, s23, {LB+8192}")
    a(f"v_add_u32 v{wa}, s23, v{voff16}")
    a(f"ds_write_b128 v{wa}, {vr(E[0],4)}")
    a(f"ds_write_b128 v{wa}, {vr(E[1],4)} offset:4096")
    a("s_cmp_eq_u32 s16, 0")
    a(f"s_cbranch_scc0 L_{name}_notw")
    a(f"v_mov_b32 v1, {LB+16384}")
    a("s_mov_b64 exec, 1")
    a(f"ds_write_b32 v1, v{tick}")
    a("s_mov_b64 exec, -1")
    a(f"L_{name}_notw:")
    a("s_waitcnt lgkmcnt(0)")
    a("s_barrier")
    ex = R.alloc()
    a(f"v_add_u32 v{ex}, {LB+8192}, v{voff16}")
    a(f"v_mov_b32 v1, {LB+16384}")
    a(f"ds_read_b32 v2, v1")
    for t in range(4):
        for m in range(2):
            a(f"ds_read_b128 {vr(A[m][t],4)}, v{ex} offset:{(m*4+t)*1024}")
    for t in range(4):
        a(f"s_waitcnt lgkmcnt({6-2*t})")
        if t == 0: a("v_readfirstlane_b32 s57, v2")
        for m in range(2):
            a(f"{MFMA16} {vr(Dr[m],4)}, {vr(A[m][t],4)}, {vr(F64r[t],4)}, " + ("0" if t == 0 else vr(Dr[m],4)))
            a(f"{MFMA16} {vr(Di[m],4)}, {vr(A[m][t],4)}, {vr(F64i[t],4)}, " + ("0" if t == 0 else vr(Di[m],4)))
    so = R.alloc()
    a(f"v_add_u32 v{t0}, s22, v{n15}")
    a(f"v_lshlrev_b32 v{so}, 7, v{t0}")
    a(f"v_lshl_add_u32 v{so}, v{g}, 4, v{so}")
    for m in range(2):
        for r in range(4): a(f"v_cvt_pk_bf16_f32 v{E[m]+r}, v{Dr[m]+r}, -v{Di[m]+r}")
    a(f"s_mul_i32 s17, s2, {CS}\ns_add_u32 s24, s17, {M.OFF_Y}")
    a.vm("y", f"buffer_store_dwordx4 {vr(E[0],4)}, v{so}, s[40:43], s24 offen sc1")
    a.vm("y", f"buffer_store_dwordx4 {vr(E[1],4)}, v{so}, s[40:43], s24 offen offset:64 sc1")
    stamp(a, 3)
    cof = R.alloc()
    a(f"v_min_u32 v{cof}, 7, v{lane}")
    a(f"v_lshlrev_b32 v{cof}, 7, v{cof}")
    a(f"v_add_u32 v{cof}, {OFF_FLAG}, v{cof}")
    a("s_cmp_lt_u32 s57, 32")
    a(f"s_cbranch_scc1 L_{name}_roleok")
    a("s_mov_b32 s17, 0")
    a(f"L_{name}_ovf:")
    a(f"buffer_load_dword v1, v{cof}, s[40:43], 0 offen sc1")
    a("s_waitcnt vmcnt(0)")
    for i in range(8): a(f"v_readlane_b32 s{60+i}, v1, {i}")
    a("s_nop 1")
    a("s_add_u32 s18, s60, s61")
    for i in range(2, 8): a(f"s_add_u32 s18, s18, s{60+i}")
    a("s_cmp_ge_u32 s18, 256")
    a(f"s_cbranch_scc1 L_{name}_ovf2")
    a("s_sleep 2")
    a(f"s_add_u32 s17, s17, 1\ns_cmp_lt_u32 s17, {CFG['spin']}")
    a(f"s_cbranch_scc1 L_{name}_ovf")
    a(f"L_{name}_ovf2:")
    a("s_sub_u32 s19, s57, 32")
    for i in range(7):
        a(f"s_max_u32 s18, s{60+i}, 32\ns_sub_u32 s18, s18, 32")
        a(f"s_cmp_gt_u32 s56, {i}\ns_cselect_b32 s18, s18, 0\ns_add_u32 s19, s19, s18")
    a("s_mov_b32 s20, 0")
    for i in range(8):
        a(f"s_min_u32 s18, s{60+i}, 32\ns_sub_u32 s21, 32, s18")
        a(f"s_cmp_lt_u32 s19, s21\ns_cselect_b32 s22, 1, 0")
        a("s_andn2_b32 s22, s22, s20")
        a("s_cmp_eq_u32 s22, 1")
        a(f"s_cselect_b32 s56, {i}, s56")
        a("s_add_u32 s23, s18, s19\ns_cmp_eq_u32 s22, 1\ns_cselect_b32 s57, s23, s57")
        a("s_or_b32 s20, s20, s22")
        a("s_sub_u32 s23, s19, s21\ns_cmp_eq_u32 s20, 1\ns_cselect_b32 s19, s19, s23")
    a("s_and_b32 s57, s57, 31")
    a(f"L_{name}_roleok:")
    R.release(base_mark)
    cof2 = R.alloc(); a(f"v_mov_b32 v{cof2}, v{cof}"); cof = cof2
    base_mark = R.mark()
    a("s_cmp_ge_u32 s57, 14\ns_cselect_b32 s59, 1, 0")
    a("s_mul_i32 s17, s59, 14\ns_sub_u32 s60, s57, s17")
    wdma = R.alloc()
    a(f"v_lshrrev_b32 v{t0}, 4, v{lane}")
    a(f"v_lshlrev_b32 v{t1}, 2, v{t0}")
    a(f"v_xor_b32 v{t1}, v{t1}, v{n15}")
    a(f"v_lshlrev_b32 v{t1}, 4, v{t1}")
    a(f"s_movk_i32 s23, 3584")
    a(f"v_mul_lo_u32 v{wdma}, v{t0}, s23")
    a(f"v_add_u32 v{wdma}, v{wdma}, v{t1}")
    a(f"s_min_u32 s17, s60, 13\ns_lshl_b32 s61, s17, 8\ns_mul_i32 s18, s16, {4*3584}\ns_add_u32 s61, s61, s18")
    a("s_lshl_b32 s62, s16, 10")
    a(f"s_and_b32 s17, s57, 7\ns_mul_i32 s63, s17, {2*112*1024}\ns_mul_i32 s18, s16, {28*1024}\ns_add_u32 s63, s63, s18\ns_add_u32 s63, s63, {OFF_W2P}")
    a(f"s_add_u32 s64, s63, {112*1024}")
    def w1_dma(n4):
        def f():
            a(f"s_add_u32 m0, s62, {n4*4096}")
            a(f"s_add_u32 s27, s61, {n4*16*3584}")
            a.vm("w1", f"buffer_load_dwordx4 v{wdma}, s[44:47], s27 offen lds")
        return f
    def w2_load(vv, dt):
        def f():
            sreg = 65 + dt
            if vv % 4 == 0: a(f"s_add_u32 s{sreg}, s{63+dt}, {vv*1024}")
            a.vm("w2", f"buffer_load_dwordx4 {ar((vv*2+dt)*4,4)}, v{voff16}, s[40:43], s{sreg} offen offset:{(vv%4)*1024}")
        return f
    w1_list = [w1_dma(n) for n in range(32)]
    w2_list = []
    for grp in range(7):
        for dt in range(2):
            for k in range(4): w2_list.append(w2_load(grp*4+k, dt))
    K = Tracked()
    a_main = a
    class Buf:
        def __init__(s): s.l = []
        def __call__(s, t):
            for x in t.split("\n"):
                if x.strip(): s.l.append(x.strip())
    b = Buf()
    nf = R.alloc(); gf4 = R.alloc()
    b(f"v_cvt_f32_u32 v{nf}, v{n15}")
    b(f"v_lshlrev_b32 v{t1}, 2, v{g}")
    b(f"v_cvt_f32_u32 v{gf4}, v{t1}")
    BAr = [R.alloc(4, 4) for _ in range(2)]; BAi = [R.alloc(4, 4) for _ in range(2)]; BB = R.alloc(4, 4)
    tc = [R.alloc() for _ in range(8)]; ts = [R.alloc() for _ in range(8)]
    ydma = R.alloc(); xo = R.alloc(); rdy = [R.alloc(), R.alloc()]; xno = R.alloc(); ywr = R.alloc()
    X = [[R.alloc(2, 2) for _ in range(2)] for _ in range(2)]
    mk = R.mark()
    dd = [R.alloc() for _ in range(4)]; rv = [R.alloc() for _ in range(8)]
    cc = [R.alloc() for _ in range(4)]; ss = [R.alloc() for _ in range(4)]
    for e in range(4):
        b(f"v_add_f32 v{dd[e]}, {float(e)}, v{gf4}") if e else b(f"v_mov_b32 v{dd[e]}, v{gf4}")
    b(f"v_mul_f32 v{t0}, {fhex(1/32)}, v{nf}")
    for i in range(4): b(f"v_mul_f32 v{rv[i]}, v{t0}, v{dd[i]}")
    for i in range(4):
        b(f"v_cos_f32 v{cc[i]}, v{rv[i]}")
        b(f"v_sin_f32 v{ss[i]}, v{rv[i]}")
    for i in range(4):
        b(f"v_cvt_pk_bf16_f32 v{BAr[0]+i}, v{cc[i]}, -v{ss[i]}")
        b(f"v_cvt_pk_bf16_f32 v{BAi[0]+i}, v{ss[i]}, v{cc[i]}")
    for i in range(4):
        if i & 1:
            b(f"v_xor_b32 v{BAr[1]+i}, 0x80008000, v{BAr[0]+i}")
            b(f"v_xor_b32 v{BAi[1]+i}, 0x80008000, v{BAi[0]+i}")
        else:
            b(f"v_mov_b32 v{BAr[1]+i}, v{BAr[0]+i}")
            b(f"v_mov_b32 v{BAi[1]+i}, v{BAi[0]+i}")
    b(f"v_mul_f32 v{t0}, {fhex(1/512)}, v{nf}")
    b(f"v_add_f32 v{t1}, {fhex(16/512)}, v{t0}")
    for r in range(4):
        b(f"v_mul_f32 v{rv[r]}, v{t0}, v{dd[r]}")
        b(f"v_mul_f32 v{rv[4+r]}, v{t1}, v{dd[r]}")
    for i in range(8):
        b(f"v_cos_f32 v{tc[i]}, v{rv[i]}")
        b(f"v_sin_f32 v{ts[i]}, -v{rv[i]}")
    b(f"v_mul_f32 v{t0}, {fhex(1/16)}, v{nf}")
    for i in range(4): b(f"v_mul_f32 v{rv[i]}, v{t0}, v{dd[i]}")
    for i in range(4):
        b(f"v_cos_f32 v{cc[i]}, v{rv[i]}")
        b(f"v_sin_f32 v{ss[i]}, v{rv[i]}")
    b(f"v_cvt_pk_bf16_f32 v{BB}, v{cc[0]}, v{cc[1]}")
    b(f"v_cvt_pk_bf16_f32 v{BB+1}, v{cc[2]}, v{cc[3]}")
    b(f"v_cvt_pk_bf16_f32 v{BB+2}, -v{ss[0]}, -v{ss[1]}")
    b(f"v_cvt_pk_bf16_f32 v{BB+3}, -v{ss[2]}, -v{ss[3]}")
    a("s_lshl_b32 s17, s56, 8\ns_lshl_b32 s18, s57, 3\ns_add_u32 s17, s17, s18")
    a(f"v_lshrrev_b32 v{t0}, 1, v{lane}")
    a(f"s_mov_b32 s18, {CS}")
    a(f"v_mul_lo_u32 v{ydma}, v{t0}, s18")
    a(f"v_and_b32 v{t0}, 1, v{lane}")
    a(f"v_lshl_add_u32 v{ydma}, v{t0}, 4, v{ydma}")
    a(f"s_mul_i32 s19, s16, {64*CS}\ns_lshl_b32 s20, s17, 2\ns_add_u32 s19, s19, s20\ns_add_u32 s19, s19, {M.OFF_Y}")
    a(f"s_add_u32 s20, s19, {32*CS}")
    a(f"s_lshl_b32 s21, s16, 11\ns_add_u32 s21, s21, {LB}")
    a(f"v_add_u32 v{ywr}, s21, v{voff16}")
    a(f"v_lshlrev_b32 v{xo}, 6, v{n15}")
    a(f"v_lshl_add_u32 v{xo}, v{g}, 3, v{xo}")
    a("s_lshl_b32 s22, s16, 1\ns_add_u32 s22, s22, s17")
    a("s_lshl_b32 s23, s22, 10")
    a(f"v_lshlrev_b32 v{rdy[0]}, 5, v{n15}")
    a(f"v_lshl_add_u32 v{rdy[0]}, v{g}, 11, v{rdy[0]}")
    a(f"s_lshl_b32 s24, s16, 3\ns_add_u32 s24, s24, {LB}")
    a(f"v_add_u32 v{rdy[0]}, s24, v{rdy[0]}")
    a(f"v_add_u32 v{rdy[1]}, 4, v{rdy[0]}")
    a(f"v_lshrrev_b32 v{t0}, 1, v{g}")
    a(f"v_lshl_add_u32 v{t0}, v{n15}, 1, v{t0}")
    a(f"v_lshlrev_b32 v{xno}, 10, v{t0}")
    a(f"v_and_b32 v{t0}, 1, v{g}")
    a(f"v_lshl_add_u32 v{xno}, v{t0}, 9, v{xno}")
    a("s_lshr_b32 s25, s22, 5\ns_lshl_b32 s25, s25, 15\ns_and_b32 s26, s22, 31\ns_lshl_b32 s26, s26, 4\ns_add_u32 s25, s25, s26")
    a(f"s_add_u32 s25, s25, {M.OFF_XN}")
    a(f"s_add_u32 s26, s23, {M.OFF_H}")
    for rr in range(2):
        for nt in range(2):
            a.vm("xres", f"buffer_load_dwordx2 {vr(X[rr][nt],2)}, v{xo}, s[28:31], s23 offen offset:{rr*1024+nt*32}")
    NW2A = CFG.get("nw2a", 16)
    pre1 = w1_list + w2_list[:NW2A]
    w2_rest = w2_list[NW2A:]
    groups = [[f] for f in pre1]
    interleave(a, groups, b.l)
    R.release(mk)
    stamp(a, 4)
    Yq = [R.alloc(4, 4) for _ in range(2)]
    a("s_mov_b32 s17, 0")
    a(f"L_{name}_ypoll:")
    a(f"buffer_load_dwordx4 {vr(Yq[0],4)}, v{ydma}, s[40:43], s19 offen sc1")
    a(f"buffer_load_dwordx4 {vr(Yq[1],4)}, v{ydma}, s[40:43], s20 offen sc1")
    a("s_waitcnt vmcnt(0)")
    a(f"v_max3_u32 v1, v{Yq[0]}, v{Yq[0]+1}, v{Yq[0]+2}")
    a(f"v_max3_u32 v2, v{Yq[1]}, v{Yq[1]+1}, v{Yq[1]+2}")
    a(f"v_max3_u32 v1, v1, v{Yq[0]+3}, v{Yq[1]+3}")
    a(f"v_max_u32 v1, v1, v2")
    a("v_cmp_eq_u32 vcc, -1, v1")
    a("s_nop 4")
    a(f"s_cbranch_vccz L_{name}_yok")
    a("s_sleep 1")
    a(f"s_add_u32 s17, s17, 1\ns_cmp_lt_u32 s17, {CFG['spin']}")
    a(f"s_cbranch_scc1 L_{name}_ypoll")
    a(f"L_{name}_yok:")
    a.vmlog = []
    a(f"ds_write_b128 v{ywr}, {vr(Yq[0],4)}")
    a(f"ds_write_b128 v{ywr}, {vr(Yq[1],4)} offset:1024")
    a("s_waitcnt lgkmcnt(0)")
    a("s_barrier")
    stamp(a, 5)
    A = [R.alloc(4, 4) for _ in range(2)]
    for rr in range(2):
        a(f"ds_read2st64_b32 {vr(A[rr],2)}, v{rdy[rr]} offset0:0 offset1:2")
        a(f"ds_read2st64_b32 {vr(A[rr]+2,2)}, v{rdy[rr]} offset0:4 offset1:6")
    cnt = R.alloc()
    a("s_cmp_eq_u32 s16, 0")
    a(f"s_cbranch_scc0 L_{name}_nocnt")
    a.vm("cnt", f"buffer_load_dword v{cnt}, v{cof}, s[40:43], 0 offen sc1", counted=False)
    a(f"L_{name}_nocnt:")
    a("s_waitcnt lgkmcnt(0)")
    for rr in range(2): a(f"v_readlane_b32 s{32+rr}, v{A[rr]}, 0")
    for rr in range(2):
        a(f"v_writelane_b32 v{A[rr]}, 0, 0")
        a(f"s_lshl_b32 s{32+rr}, s{32+rr}, 16")
    V = [[[R.alloc(4, 4) for _ in range(2)] for _ in range(2)] for _ in range(2)]
    for rr in range(2):
        for nt in range(2):
            a(f"{MFMA16} {vr(V[rr][nt][0],4)}, {vr(A[rr],4)}, {vr(BAr[nt],4)}, 0")
            a(f"{MFMA16} {vr(V[rr][nt][1],4)}, {vr(A[rr],4)}, {vr(BAi[nt],4)}, 0")
    Tr = [R.alloc() for _ in range(8)]; Ti = [R.alloc() for _ in range(8)]
    PA = [[R.alloc(4, 4) for _ in range(2)] for _ in range(2)]
    Yd = [[R.alloc(4, 4) for _ in range(2)] for _ in range(2)]
    for rr in range(2):
        sre = [V[rr][0][0]+r for r in range(4)] + [V[rr][1][0]+r for r in range(4)]
        sim = [V[rr][0][1]+r for r in range(4)] + [V[rr][1][1]+r for r in range(4)]
        cmul_tw(a, Tr, Ti, sre, sim, tc, ts)
        for nt in range(2):
            a(f"v_cvt_pk_bf16_f32 v{PA[rr][nt]}, v{Tr[4*nt]}, v{Tr[4*nt+1]}")
            a(f"v_cvt_pk_bf16_f32 v{PA[rr][nt]+1}, v{Tr[4*nt+2]}, v{Tr[4*nt+3]}")
            a(f"v_cvt_pk_bf16_f32 v{PA[rr][nt]+2}, v{Ti[4*nt]}, v{Ti[4*nt+1]}")
            a(f"v_cvt_pk_bf16_f32 v{PA[rr][nt]+3}, v{Ti[4*nt+2]}, v{Ti[4*nt+3]}")
        for nt in range(2):
            a(f"{MFMA16} {vr(Yd[rr][nt],4)}, {vr(PA[rr][nt],4)}, {vr(BB,4)}, 0")
    Hv = [[R.alloc() for _ in range(8)] for _ in range(2)]
    for rr in range(2):
        for nt in range(2):
            for k in range(2):
                a(f"v_lshlrev_b32 v{Hv[rr][4*nt+2*k]}, 16, v{X[rr][nt]+k}")
                a(f"v_and_b32 v{Hv[rr][4*nt+2*k+1]}, 0xffff0000, v{X[rr][nt]+k}")
    for rr in range(2):
        for i in range(8):
            if i & 1: a(f"v_subrev_f32 v{Hv[rr][i]}, s{32+rr}, v{Hv[rr][i]}")
            else: a(f"v_add_f32 v{Hv[rr][i]}, s{32+rr}, v{Hv[rr][i]}")
    for rr in range(2):
        for i in range(8): a(f"v_add_f32 v{Hv[rr][i]}, v{Hv[rr][i]}, v{Yd[rr][i>>2]+(i&3)}")
    sm = [R.alloc(), R.alloc()]; sq = [R.alloc(), R.alloc()]
    for rr in range(2):
        a(f"v_add_f32 v{sm[rr]}, v{Hv[rr][0]}, v{Hv[rr][1]}")
        a(f"v_mul_f32 v{sq[rr]}, v{Hv[rr][0]}, v{Hv[rr][0]}")
    for i in range(1, 8):
        for rr in range(2):
            if i > 1: a(f"v_add_f32 v{sm[rr]}, v{sm[rr]}, v{Hv[rr][i]}")
            a(f"v_fma_f32 v{sq[rr]}, v{Hv[rr][i]}, v{Hv[rr][i]}, v{sq[rr]}")
    Hp = [[R.alloc(2, 2) for _ in range(2)] for _ in range(2)]
    for rr in range(2):
        for nt in range(2):
            for k in range(2):
                a(f"v_cvt_pk_bf16_f32 v{Hp[rr][nt]+k}, v{Hv[rr][4*nt+2*k]}, v{Hv[rr][4*nt+2*k+1]}")
    for rr in range(2):
        for nt in range(2):
            a.vm("h", f"buffer_store_dwordx2 {vr(Hp[rr][nt],2)}, v{xo}, s[40:43], s26 offen offset:{rr*1024+nt*32}")
    wave_reduce_add(a, sm + sq)
    a(f"s_mov_b32 s27, {fhex(1/512)}")
    for rr in range(2): a(f"v_mul_f32 v{sm[rr]}, s27, v{sm[rr]}")
    for rr in range(2): a(f"v_mul_f32 v{t0+rr}, v{sm[rr]}, v{sm[rr]}")
    for rr in range(2): a(f"v_fma_f32 v{sq[rr]}, v{sq[rr]}, s27, -v{t0+rr}")
    for rr in range(2): a(f"v_max_f32 v{sq[rr]}, 0, v{sq[rr]}")
    for rr in range(2): a(f"v_add_f32 v{sq[rr]}, {fhex(1e-5)}, v{sq[rr]}")
    for rr in range(2): a(f"v_rsq_f32 v{sq[rr]}, v{sq[rr]}")
    for rr in range(2): a(f"v_mul_f32 v{sm[rr]}, -v{sm[rr]}, v{sq[rr]}")
    for rr in range(2):
        a(f"v_readlane_b32 s{34+rr}, v{sq[rr]}, 63")
        a(f"v_readlane_b32 s{36+rr}, v{sm[rr]}, 63")
    for rr in range(2): a(f"v_mov_b32 v{sm[rr]}, s{36+rr}")
    for rr in range(2):
        for i in range(8): a(f"v_fma_f32 v{Hv[rr][i]}, v{Hv[rr][i]}, s{34+rr}, v{sm[rr]}")
    Q = [R.alloc(4, 4) for _ in range(2)]
    for rr in range(2):
        for k in range(4): a(f"v_cvt_pk_bf16_f32 v{Q[rr]+k}, v{Hv[rr][2*k]}, v{Hv[rr][2*k+1]}")
    for rr in range(2):
        a.vm("xn", f"buffer_store_dwordx4 {vr(Q[rr],4)}, v{xno}, s[40:43], s25 offen offset:{rr*16}")
    stamp(a, 6)
    a("s_mov_b32 s58, 1")
    a("s_cmp_eq_u32 s16, 0")
    a(f"s_cbranch_scc0 L_{name}_pured")
    a("s_mov_b32 s17, 0")
    a(f"L_{name}_purel:")
    a("s_waitcnt vmcnt(0)")
    a(f"v_readlane_b32 s18, v{cnt}, s56")
    a("s_nop 1")
    a("s_cmp_ge_u32 s18, 32")
    a(f"s_cbranch_scc1 L_{name}_pured")
    a(f"v_readlane_b32 s18, v{cnt}, 0")
    for i in range(1, 8):
        a(f"v_readlane_b32 s19, v{cnt}, {i}\ns_nop 1\ns_add_u32 s18, s18, s19")
    a("s_mov_b32 s58, 0")
    a("s_cmp_ge_u32 s18, 256")
    a(f"s_cbranch_scc1 L_{name}_pured")
    a(f"buffer_load_dword v{cnt}, v{cof}, s[40:43], 0 offen sc1")
    a("s_sleep 2")
    a(f"s_add_u32 s17, s17, 1\ns_cmp_lt_u32 s17, {CFG['spin']}")
    a(f"s_cbranch_scc1 L_{name}_purel")
    a(f"L_{name}_pured:")
    if CFG.get("force_impure"): a("s_mov_b32 s58, 0")
    publish(a, name, "xn", OFF_FLAG + 1024)
    stamp(a, 7)
    R.release(base_mark)
    W1F = 128
    ab0 = R.alloc(); ab = [R.alloc(), R.alloc()]
    a(f"v_lshrrev_b32 v{t0}, 5, v{lane}")
    a(f"v_bfe_u32 v{t1}, v{lane}, 2, 2")
    a(f"v_lshl_add_u32 v{t0}, v{t0}, 2, v{t1}")
    a(f"v_lshlrev_b32 v{ab0}, 8, v{t0}")
    a(f"v_lshl_add_u32 v{ab0}, v{t1}, 6, v{ab0}")
    a(f"v_bfe_u32 v{t1}, v{lane}, 4, 1")
    a(f"v_lshl_add_u32 v{ab0}, v{t1}, 5, v{ab0}")
    a(f"v_and_b32 v{t1}, 3, v{lane}")
    a(f"v_lshl_add_u32 v{ab0}, v{t1}, 3, v{ab0}")
    a("s_lshl_b32 s17, s16, 6")
    a(f"v_xor_b32 v{ab[0]}, s17, v{ab0}")
    a(f"v_add_u32 v{ab[1]}, 0x10000, v{ab[0]}")
    NW2B = CFG.get("nw2b", 16)
    trs = []
    for u in range(32):
        off = (32*((u & 15) >> 1) + 8*(u & 1)) * 256
        trs.append([f"ds_read_b64_tr_b16 {vr(W1F+4*u,2)}, v{ab[u>>4]} offset:{off}",
                    f"ds_read_b64_tr_b16 {vr(W1F+4*u+2,2)}, v{ab[u>>4]} offset:{off+4096}"])
    interleave(a, trs, w2_rest[:NW2B])
    w2_rest = w2_rest[NW2B:]
    st0 = "s59"
    a("s_lshl_b32 s17, s56, 3\ns_lshl_b32 s18, s59, 2\ns_add_u32 s17, s17, s18")
    a(f"s_lshl_b32 s20, s17, 15\ns_lshl_b32 s18, s16, 13\ns_add_u32 s20, s20, s18\ns_add_u32 s20, s20, {M.OFF_XN}")
    a("s_lshl_b32 s21, s16, 13")
    a(f"s_mul_i32 s22, s17, {112*1024}\ns_lshl_b32 s18, s60, 13\ns_add_u32 s22, s22, s18\ns_lshl_b32 s18, s16, 11\ns_add_u32 s22, s22, s18\ns_add_u32 s22, s22, {M.OFF_ACT}")
    bias = R.alloc(16, 4); braw = R.alloc(8, 2)
    a(f"v_lshrrev_b32 v{t0}, 5, v{lane}")
    a(f"v_lshlrev_b32 v{t0}, 3, v{t0}")
    a(f"s_min_u32 s18, s60, 13\ns_lshl_b32 s18, s18, 8\ns_lshl_b32 s19, s16, 6\ns_add_u32 s18, s18, s19")
    for q in range(4):
        a.vm("bias", f"buffer_load_dwordx2 {vr(braw+2*q,2)}, v{t0}, s[48:51], s18 offen offset:{q*16}")
    fo = R.alloc()
    a(f"v_and_b32 v{fo}, 15, v{lane}")
    a(f"s_lshl_b32 s18, s56, 7\ns_lshl_b32 s19, s59, 6\ns_add_u32 s18, s18, s19\ns_add_u32 s18, s18, {OFF_FLAG+1024}")
    a(f"v_lshlrev_b32 v{fo}, 2, v{fo}")
    a(f"v_add_u32 v{fo}, s18, v{fo}")
    a("s_waitcnt lgkmcnt(0)")
    poll_flags(a, name, "xnw", fo, 16)
    stamp(a, 8)
    a("s_cmp_ge_u32 s57, 28")
    a(f"s_cbranch_scc1 L_{name}_skip4")
    saved_log = list(a.vmlog)
    def xn_dma(st, half):
        def f():
            a(f"s_add_u32 m0, s21, {st*32768 + half*4096}")
            a(f"s_add_u32 s27, s20, {st*32768 + half*4096}")
            for i in range(4):
                a.vm(f"xn{st}", f"buffer_load_dwordx4 v{voff16}, s[40:43], s27 offen offset:{i*1024} sc1 lds")
        return f
    def xn_dma1(st, k):
        def f():
            if k % 4 == 0:
                a(f"s_add_u32 m0, s21, {st*32768 + (k//4)*4096}")
                a(f"s_add_u32 s27, s20, {st*32768 + (k//4)*4096}")
            a.vm(f"xn{st}", f"buffer_load_dwordx4 v{voff16}, s[40:43], s27 offen offset:{(k%4)*1024} sc1 lds")
        return f
    for k in range(8): xn_dma1(0, k)()
    for k in range(8): xn_dma1(1, k)()
    a.wait_vm("bias")
    for q in range(4):
        for k in range(2):
            a(f"v_lshlrev_b32 v{bias+4*q+2*k}, 16, v{braw+2*q+k}")
            a(f"v_and_b32 v{bias+4*q+2*k+1}, 0xffff0000, v{braw+2*q+k}")
    acc = [R.alloc(16, 4), R.alloc(16, 4)]
    NR = 4
    ring = [R.alloc(4, 4) for _ in range(NR)]
    tmp = [R.alloc() for _ in range(8)]
    pk = R.alloc(8, 4)
    vb = [voff16, R.alloc()]
    a(f"v_add_u32 v{vb[1]}, 0x10000, v{voff16}")
    assert R.n <= W1F, R.n
    def rdx(st, u):
        addr = (st*32 + u) * 1024
        return f"ds_read_b128 {vr(ring[u%NR],4)}, v{vb[addr>>16]} offset:{addr & 0xffff}"
    def epi(st):
        ops = mish_ops(acc[st & 1], tmp, pk)
        half = len(ops) // 2
        res = list(ops[:half])
        sreg = f"s{23}"
        res.append(lambda: a.vm("act", f"buffer_store_dwordx4 {vr(pk,4)}, v{voff16}, s[40:43], s23 offen"))
        res += ops[half:]
        res.append(lambda: a.vm("act", f"buffer_store_dwordx4 {vr(pk+4,4)}, v{voff16}, s[40:43], s23 offen offset:1024"))
        return [f"s_add_u32 s23, s22, {st*112*1024}"] + res
    for st in range(4):
        a.wait_vm(f"xn{st}")
        a("s_barrier")
        fill = epi(st-1) if st > 0 else []
        mem = []
        if st == 0: mem = [xn_dma1(2, k) for k in range(8)]
        elif st == 1: mem = [xn_dma1(3, k) for k in range(8)]
        else:
            n = (len(w2_rest) + (3 - st)) // (4 - st)
            mem = w2_rest[:n]; w2_rest = w2_rest[n:]
        for u in range(NR - 1): a(rdx(st, u))
        for u in range(32):
            a(f"s_waitcnt lgkmcnt({min(NR-2, 31-u)})")
            a(f"{MFMA32} {vr(acc[st&1],16)}, {vr(W1F+4*u,4)}, {vr(ring[u%NR],4)}, " + (vr(bias,16) if u == 0 else vr(acc[st&1],16)))
            if u + NR - 1 < 32: a(rdx(st, u + NR - 1))
            if mem and (u % 2 == 0 or len(mem) > (32 - u) // 2): mem.pop(0)()
            if u >= 2 and fill:
                k = -(-len(fill) // (32 - u))
                for _ in range(min(k, len(fill))):
                    f = fill.pop(0)
                    f() if callable(f) else a(f)
        assert not fill and not mem
        stamp(a, 9) if st == 0 else None
    for f in epi(3):
        f() if callable(f) else a(f)
    assert not w2_rest
    stamp(a, 10)
    publish(a, name, "act", OFF_FLAG + 2048)
    a(f"s_branch L_{name}_k5")
    a(f"L_{name}_skip4:")
    a.vmlog = []
    done = set()
    rest = w2_list[NW2A+NW2B:]
    for f in rest: f()
    a("s_mov_b32 s58, s58")
    a(f"L_{name}_k5:")
    a.vmlog = []
    stamp(a, 11)
    R.release(base_mark)
    PD = 8
    a("s_lshr_b32 s17, s57, 3\ns_and_b32 s18, s57, 7")
    a("s_lshl_b32 s19, s56, 3\ns_lshl_b32 s20, s17, 1\ns_add_u32 s19, s19, s20")
    a(f"s_mul_i32 s20, s19, 114688\ns_mul_i32 s21, s16, {28*1024}\ns_add_u32 s20, s20, s21\ns_add_u32 s20, s20, {M.OFF_ACT}")
    a(f"s_add_u32 s21, s20, 114688")
    eo = R.alloc()
    a(f"v_lshrrev_b32 v{t0}, 2, v{lane}")
    a(f"v_lshlrev_b32 v{eo}, 10, v{t0}")
    a(f"v_and_b32 v{t1}, 3, v{lane}")
    a(f"v_lshl_add_u32 v{eo}, v{t1}, 5, v{eo}")
    a("s_lshl_b32 s23, s19, 5\ns_lshl_b32 s24, s16, 4\ns_add_u32 s23, s23, s24\ns_lshl_b32 s23, s23, 10\ns_lshl_b32 s24, s18, 7\ns_add_u32 s23, s23, s24")
    a(f"s_add_u32 s24, s23, {M.OFF_H}")
    fo = R.alloc()
    a(f"v_min_u32 v{fo}, 13, v{lane}")
    a(f"s_lshr_b32 s17, s17, 1\ns_mul_i32 s17, s17, 56\ns_lshl_b32 s18, s56, 7\ns_add_u32 s17, s17, s18\ns_add_u32 s17, s17, {OFF_FLAG+2048}")
    a(f"v_lshlrev_b32 v{fo}, 2, v{fo}")
    a(f"v_add_u32 v{fo}, s17, v{fo}")
    poll_flags(a, name, "actw", fo, 14)
    stamp(a, 12)
    Hq = [R.alloc(4, 4) for _ in range(2)]
    a.vm("hq", f"buffer_load_dwordx4 {vr(Hq[0],4)}, v{eo}, s[40:43], s24 offen sc1")
    a.vm("hq", f"buffer_load_dwordx4 {vr(Hq[1],4)}, v{eo}, s[40:43], s24 offen offset:16 sc1")
    B = [[R.alloc(4, 4) for _ in range(2)] for _ in range(PD)]
    def issue(v):
        sl = v % PD
        if v % 4 == 0:
            a(f"s_add_u32 s26, s20, {v*1024}")
            a(f"s_add_u32 s27, s21, {v*1024}")
        a.vm(f"a{v}", f"buffer_load_dwordx4 {vr(B[sl][0],4)}, v{voff16}, s[40:43], s26 offen offset:{(v%4)*1024} sc1")
        a.vm(f"a{v}", f"buffer_load_dwordx4 {vr(B[sl][1],4)}, v{voff16}, s[40:43], s27 offen offset:{(v%4)*1024} sc1")
    for v in range(PD): issue(v)
    acc = [[R.alloc(16, 4) for _ in range(2)] for _ in range(2)]
    NK = 28
    for v in range(NK):
        a.wait_vm(f"a{v}")
        for dt in range(2):
            for m in range(2):
                a(f"{MFMA32} {vr(acc[dt][m],16)}, {ar((v*2+dt)*4,4)}, {vr(B[v%PD][m],4)}, " + ("0" if v == 0 else vr(acc[dt][m],16)))
        if v + PD < NK: issue(v + PD)
    stamp(a, 13)
    a("s_barrier")
    wa = R.alloc()
    a(f"v_and_b32 v{t0}, 31, v{lane}")
    a(f"v_mul_u32_u24 v{wa}, 272, v{t0}")
    a(f"v_lshrrev_b32 v{t0}, 5, v{lane}")
    a(f"v_lshl_add_u32 v{wa}, v{t0}, 4, v{wa}")
    a(f"s_mul_i32 s28, s16, 17408")
    a(f"v_add_u32 v{wa}, s28, v{wa}")
    for m in range(2):
        for dt in range(2):
            for q in range(4):
                a(f"ds_write_b128 v{wa}, {vr(acc[dt][m]+4*q,4)} offset:{m*32*272 + (32*dt+8*q)*4}")
    ra = R.alloc()
    a(f"v_lshrrev_b32 v{t0}, 2, v{lane}")
    a(f"s_lshl_b32 s28, s16, 4")
    a(f"v_add_u32 v{t0}, s28, v{t0}")
    a(f"v_mul_u32_u24 v{ra}, 272, v{t0}")
    a(f"v_and_b32 v{t1}, 3, v{lane}")
    a(f"v_lshl_add_u32 v{ra}, v{t1}, 6, v{ra}")
    a("s_waitcnt lgkmcnt(0)")
    a("s_barrier")
    Pq = [[B[p][0], B[p][1], B[p+4][0], B[p+4][1]] for p in range(4)]
    for p in range(4):
        for k in range(4):
            a(f"ds_read_b128 {vr(Pq[p][k],4)}, v{ra} offset:{p*17408 + k*16}")
    Hf = [acc[0][0] + i for i in range(16)]
    for h in range(2):
        for k in range(4):
            a(f"v_lshlrev_b32 v{Hf[8*h+2*k]}, 16, v{Hq[h]+k}")
            a(f"v_and_b32 v{Hf[8*h+2*k+1]}, 0xffff0000, v{Hq[h]+k}")
    for p in range(4):
        a(f"s_waitcnt lgkmcnt({4*(3-p)})")
        for k in range(4):
            for i in range(4): a(f"v_add_f32 v{Hf[4*k+i]}, v{Hf[4*k+i]}, v{Pq[p][k]+i}")
    O = [acc[1][0], acc[1][0] + 4]
    for h in range(2):
        for k in range(4): a(f"v_cvt_pk_bf16_f32 v{O[h]+k}, v{Hf[8*h+2*k]}, v{Hf[8*h+2*k+1]}")
    a(f"buffer_store_dwordx4 {vr(O[0],4)}, v{eo}, s[52:55], s23 offen")
    a(f"buffer_store_dwordx4 {vr(O[1],4)}, v{eo}, s[52:55], s23 offen offset:16")
    stamp_flush(a, name, 1, 14)
    a(f"L_{name}_end:")
    a("s_endpgm")
    a.raw(kernel_desc(name, 512, 102, accum=256))
    return 512

def build():
    a = Tracked()
    a.raw("; @launch kernel=kA_kernel grid=(256,1,1) block=(256,1,1) lds=24576")
    a.raw("; @launch kernel=kB_kernel grid=(256,1,1) block=(256,1,1) lds=163840")
    a.raw('.amdgcn_target "amdgcn-amd-amdhsa--gfx950"')
    kA(a, "kA_kernel")
    a.vmlog = []; a.lglog = []
    kB(a, "kB_kernel")
    return a.text()

if __name__ == "__main__":
    for arg in sys.argv[2:]:
        if arg == "stamp": CFG["stamp"] = True
        elif arg == "cyc": CFG["stamp"] = True; CFG["cyc"] = True
        elif arg == "fake": CFG["fake_xcc"] = True; CFG["force_impure"] = True
        elif "=" in arg:
            k, v = arg.split("="); CFG[k] = int(v)
    open(sys.argv[1], "w").write(build())
```
